```python
import torch

def _softmax(x, axis=-1):
    return torch.softmax(x, dim=axis)
def _gelu(x):
    return torch.nn.functional.gelu(x, approximate="tanh")
def _silu(x):
    return torch.nn.functional.silu(x)
def _sigmoid(x):
    return torch.sigmoid(x)
def _layernorm(x, axis=-1, eps=1e-5):
    m = x.mean(dim=axis, keepdim=True)
    v = x.var(dim=axis, keepdim=True, unbiased=False)
    return (x - m) / torch.sqrt(v + eps)
def _scatter_add(tgt, idx, src, axis=0):
    return tgt.clone().index_add_(axis, idx, src)
def _segment_sum(src, seg, n):
    out = torch.zeros((n,) + src.shape[1:], dtype=src.dtype)
    return out.index_add_(0, seg, src)
def _pad(x, pw):
    flat = tuple(v for pair in reversed(pw) for v in pair)
    return torch.nn.functional.pad(x, flat)

kernel_name = 'standalone__kv_cache_quant_int4_int2_kv_with_per_channel_or_per_token_scales__decode'

def setup_inputs():

    _w = (lambda a: (lambda t: t.to(torch.bfloat16) if t.is_floating_point() else t)(torch.as_tensor(a)))
    B = 1
    Sq = 1
    Skv = 32768
    Hq = 32
    Hkv = 32
    Dh = 192
    bits = 3
    G = -1
    if G <= 0 or G >= Skv:
        G = max(1, Skv // 2)
    Skv = (Skv // G) * G
    ngk = Skv // G
    qmax = (1 << bits) - 1
    return {
        "q": _w((lambda *s: torch.randn(*s, dtype=torch.bfloat16) * 3.2)(B, Hq, Sq, Dh)),
        "qk": _w(torch.randint(0, qmax + 1, (B, Hkv, Skv, Dh)).to(torch.int32)),
        "qv": _w(torch.randint(0, qmax + 1, (B, Hkv, Skv, Dh)).to(torch.int32)),
        "k_scales": _w(torch.abs((lambda *s: torch.randn(*s, dtype=torch.bfloat16) * 3.2)(B, Hkv, ngk, Dh)) * 0.05 + 0.02),
        "k_zeros": _w((lambda *s: torch.randn(*s, dtype=torch.bfloat16) * 3.2)(B, Hkv, ngk, Dh) + float(qmax) / 2.0),
        "v_scales": _w(torch.abs((lambda *s: torch.randn(*s, dtype=torch.bfloat16) * 0.05)(B, Hkv, Skv, 1)) * 0.05 + 0.02),
        "v_zeros": _w((lambda *s: torch.randn(*s, dtype=torch.bfloat16) * 0.05)(B, Hkv, Skv, 1) + float(qmax) / 2.0),
    }

def reference(q, qk, qv, k_scales, k_zeros, v_scales, v_zeros):
    B, Hq, Sq, Dh = q.shape
    Hkv, Skv = qk.shape[1], qk.shape[2]
    ngk = k_scales.shape[2]
    G = Skv // ngk
    ks = (lambda x, n, axis: torch.repeat_interleave(x, n, dim=axis))(k_scales, G, axis=2)
    kz = (lambda x, n, axis: torch.repeat_interleave(x, n, dim=axis))(k_zeros, G, axis=2)
    k = ((lambda x, dt: x.to(dt))(qk, q.dtype) - kz) * ks
    v = ((lambda x, dt: x.to(dt))(qv, q.dtype) - v_zeros) * v_scales
    rep = Hq // Hkv
    if rep > 1:
        k = (lambda x, n, axis: torch.repeat_interleave(x, n, dim=axis))(k, rep, axis=1)
        v = (lambda x, n, axis: torch.repeat_interleave(x, n, dim=axis))(v, rep, axis=1)
    scale = float(Dh) ** -0.5
    logits = torch.einsum("bhqd,bhkd->bhqk", q, k) * scale
    p = _softmax(logits, axis=-1)
    o = torch.einsum("bhqk,bhkd->bhqd", p, v)
    return o
```

```python
import sys, math, struct, argparse

NAME = "standalone__kv_cache_quant_int4_int2_kv_with_per_channel_or_per_token_scales__decode"
HEADER = """; Kernarg layout for this problem (80 bytes, ptrs only, base s[0:1]):
"""

def f2u(x):
    return struct.unpack("<I", struct.pack("<f", x))[0]

H = 32; S = 32768; DH = 192; ROWB = DH * 4
KVBYTES = H * S * ROWB
HEADB = S * ROWB
REC = 1024

class Em:
    def __init__(self):
        self.l = []
    def __call__(self, s):
        self.l.append("    " + s)
    def lab(self, s):
        self.l.append(s + ":")
    def raw(self, s):
        self.l.append(s)
    def text(self):
        return "\n".join(self.l) + "\n"

def gen(W=4, NWG=1024, D=2, pol="nt", hmajor=True, wavecontig=False, noload=False, nocompute=False):
    NS = NWG // H
    T = S // NS
    NT = T // (64 * W)
    assert NT >= 1 and NT * 64 * W == T and T <= S // 2
    pf = (" " + pol) if pol else ""
    e = Em()
    K1 = NAME + "_kernel"
    K2 = "combine_kernel"
    lds_stat = W * 4 * 768
    lds = lds_stat + W * 4 * 16
    hdr = HEADER
    hdr += f"; @launch kernel={K1} grid=({NWG},1,1) block=({64*W},1,1) lds={lds}\n"
    hdr += f"; @launch kernel={K2} grid=(32,1,1) block=(256,1,1) lds=0\n"
    e.raw('.amdgcn_target "amdgcn-amd-amdhsa--gfx950"')
    e.raw(".text")
    e.raw(f".globl {K1}")
    e.raw(".p2align 8")
    e.raw(f".type {K1},@function")
    e.lab(K1)
    vOffK, vOffS, vM, vL, vC, vVS, vWZ, vVSN, vVZN = 1, 2, 3, 4, 5, 6, 7, 8, 9
    vS, vW, vT = 10, 12, 14
    vAcc, vCoef, vNB = 16, 28, 40
    vRing = 42
    nv = vRing + 24 * D
    def KR(slot): return vRing + 24 * slot
    def VR(slot): return vRing + 24 * slot + 12
    sPf, sVs, sTile, sH, sJ, sWv = 24, 25, 26, 27, 28, 29
    e(f"s_cmp_ge_u32 s2, {NWG}")
    e("s_cbranch_scc1 L_end1")
    e("s_load_dwordx4 s[32:35], s[0:1], 0")
    e("s_load_dwordx4 s[36:39], s[0:1], 16")
    e("s_load_dwordx4 s[40:43], s[0:1], 32")
    e("s_load_dwordx2 s[44:45], s[0:1], 48")
    e("s_load_dwordx2 s[46:47], s[0:1], 72")
    lg = int(math.log2(NS)); assert 1 << lg == NS
    if hmajor:
        e(f"s_lshr_b32 s{sH}, s2, {lg}")
        e(f"s_and_b32 s{sJ}, s2, {NS-1}")
    else:
        e(f"s_and_b32 s{sH}, s2, 31")
        e(f"s_lshr_b32 s{sJ}, s2, 5")
    e("v_lshrrev_b32 v14, 6, v0")
    e("v_and_b32 v0, 63, v0")
    e(f"v_readfirstlane_b32 s{sWv}, v14")
    e("v_lshrrev_b32 v14, 4, v0")
    e("v_and_b32 v15, 15, v0")
    e(f"v_mul_u32_u24 v{vOffK}, {ROWB}, v14")
    e(f"v_lshl_add_u32 v{vOffK}, v15, 4, v{vOffK}")
    e(f"v_lshlrev_b32 v{vOffS}, 3, v15")
    e(f"v_lshl_add_u32 v{vOffS}, v14, 1, v{vOffS}")
    e(f"v_lshlrev_b32 v13, 3, v15")
    e(f"s_lshl_b32 s30, s{sH}, 15")
    e(f"s_mul_i32 s31, s{sJ}, {T}")
    e("s_add_u32 s30, s30, s31")
    e(f"s_mul_i32 s31, s{sWv}, {64*NT if wavecontig else 64}")
    e("s_add_u32 s30, s30, s31")
    e(f"s_mul_i32 s{sPf}, s30, {ROWB}")
    e(f"s_lshl_b32 s{sVs}, s30, 1")
    e(f"s_mul_i32 s31, s{sJ}, {T}")
    e("s_lshr_b32 s31, s31, 14")
    e("s_mul_i32 s31, s31, 384")
    e(f"s_mul_i32 s48, s{sH}, 768")
    e("s_add_u32 s48, s48, s31")
    e(f"s_mul_i32 s49, s{sH}, 384")
    e(f"v_mov_b32 v{vVSN}, 0")
    e(f"v_mov_b32 v{vVZN}, 0")
    e("s_waitcnt lgkmcnt(0)")
    def srd(d, lo, n):
        e(f"s_mov_b32 s{d}, s{lo}")
        e(f"s_and_b32 s{d+1}, s{lo+1}, 0xffff")
        e(f"s_mov_b32 s{d+2}, {n}")
        e(f"s_mov_b32 s{d+3}, 0x20000")
    srd(4, 34, KVBYTES)
    srd(8, 36, KVBYTES)
    srd(12, 42, H * S * 2)
    srd(16, 44, H * S * 2)
    q = []
    srd(20, 32, H * DH * 2)
    for i in range(3):
        e(f"buffer_load_dwordx2 v[{16+2*i}:{17+2*i}], v13, s[20:23], s49 offen offset:{128*i}"); q.append("small")
    srd(52, 38, H * 2 * DH * 2)
    for i in range(3):
        e(f"buffer_load_dwordx2 v[{22+2*i}:{23+2*i}], v13, s[52:55], s48 offen offset:{128*i}"); q.append("small")
    srd(56, 40, H * 2 * DH * 2)
    for i in range(3):
        e(f"buffer_load_dwordx2 v[{28+2*i}:{29+2*i}], v13, s[56:59], s48 offen offset:{128*i}"); q.append("small")

    tile_jump = 3072 if wavecontig else 3072 + (W - 1) * 64 * ROWB
    vs_jump = 128 if wavecontig else 128 * W

    def issue_vs():
        e(f"buffer_load_short_d16_hi v{vVSN}, v{vOffS}, s[12:15], s{sVs} offen"); q.append("vs")
        e(f"buffer_load_short_d16_hi v{vVZN}, v{vOffS}, s[16:19], s{sVs} offen"); q.append("vs")
        e(f"s_add_u32 s{sVs}, s{sVs}, {vs_jump}")
    def issue(kind, slot, tag):
        base = KR(slot) if kind == "K" else VR(slot)
        sr = "s[4:7]" if kind == "K" else "s[8:11]"
        for i in range(3):
            e(f"buffer_load_dwordx4 v[{base+4*i}:{base+4*i+3}], v{vOffK}, {sr}, s{sPf} offen offset:{256*i}{pf}")
            q.append(tag)
    def wait(tag):
        idx = max(i for i, t in enumerate(q) if t == tag)
        n = len(q) - 1 - idx
        del q[:idx + 1]
        e(f"s_waitcnt vmcnt({n})")
        return n
    issue_vs()
    for s in range(D):
        issue("K", s, ("K", 0, s))
        issue("V", s, ("V", 0, s))
        e(f"s_add_u32 s{sPf}, s{sPf}, {tile_jump if s == 15 else 3072}")
    wait("small")
    CS = (DH ** -0.5) * math.log2(math.e)
    e(f"s_mov_b32 s50, 0x{f2u(CS):08x}")
    e(f"v_mov_b32 v{vNB}, 0")
    e(f"v_mov_b32 v{vNB+1}, 0")
    for i in range(6):
        qr, kr, zr = 16 + i, 22 + i, 28 + i
        e(f"v_lshlrev_b32 v10, 16, v{qr}")
        e(f"v_and_b32 v11, 0xffff0000, v{qr}")
        e(f"v_lshlrev_b32 v12, 16, v{kr}")
        e(f"v_and_b32 v13, 0xffff0000, v{kr}")
        e(f"v_lshlrev_b32 v14, 16, v{zr}")
        e(f"v_and_b32 v15, 0xffff0000, v{zr}")
        e(f"v_mul_f32 v10, v10, v12")
        e(f"v_mul_f32 v11, v11, v13")
        e(f"v_mul_f32 v{qr}, s50, v10")
        e(f"v_mul_f32 v{kr}, s50, v11")
        e(f"v_fma_f32 v{vNB}, -v{qr}, v14, v{vNB}")
        e(f"v_fma_f32 v{vNB+1}, -v{kr}, v15, v{vNB+1}")
    for i in range(6):
        e(f"v_mov_b32 v{vCoef+2*i}, v{16+i}")
        e(f"v_mov_b32 v{vCoef+2*i+1}, v{22+i}")
    for i in range(12):
        e(f"v_mov_b32 v{vAcc+i}, 0")
    e(f"v_mov_b32 v{vM}, 0xff800000")
    e(f"v_mov_b32 v{vL}, 0")
    e(f"v_mov_b32 v{vC}, 0")
    e(f"s_mov_b32 s{sTile}, {NT}")

    def body(it, emit_lines):
        counts = []
        for s in range(16):
            slot = s % D if (16 % D == 0) else None
            assert slot is not None, "D must divide 16"
            k = KR(slot); v = VR(slot)
            counts.append(wait(("K", it, s)))
            if s == 0:
                e(f"v_mov_b32 v{vVS}, v{vVSN}")
                e(f"v_mul_f32 v{vWZ}, v{vVSN}, v{vVZN}")
            if not nocompute:
                for i in range(12):
                    e(f"v_cvt_f32_i32 v{k+i}, v{k+i}")
                e(f"v_pk_fma_f32 v[{vS}:{vS+1}], v[{k}:{k+1}], v[{vCoef}:{vCoef+1}], v[{vNB}:{vNB+1}]")
                for i in range(1, 6):
                    e(f"v_pk_fma_f32 v[{vS}:{vS+1}], v[{k+2*i}:{k+2*i+1}], v[{vCoef+2*i}:{vCoef+2*i+1}], v[{vS}:{vS+1}]")
                e(f"v_add_f32 v{vS}, v{vS}, v{vS+1}")
            ns = s + D
            nit = it + (1 if ns >= 16 else 0)
            if ns == 16:
                e(f"s_cmp_eq_u32 s{sTile}, 1")
                e(f"s_cselect_b32 s6, 0, s6")
                e(f"s_cselect_b32 s10, 0, s10")
                e(f"s_cselect_b32 s14, 0, s14")
                e(f"s_cselect_b32 s18, 0, s18")
                issue_vs()
            issue("K", slot, ("K", nit, ns % 16))
            counts.append(wait(("V", it, s)))
            if not nocompute:
                cv = [f"v_cvt_f32_i32 v{v+i}, v{v+i}" for i in range(12)]
                for j, rot in enumerate((8, 4, 2, 1)):
                    e(f"v_add_f32_dpp v{vS}, v{vS}, v{vS} row_ror:{rot} row_mask:0xf bank_mask:0xf")
                    if j < 3:
                        e(cv.pop(0)); e(cv.pop(0))
                e(f"v_cmp_gt_f32 vcc, v{vS}, v{vM}")
                for c_ in cv: e(c_)
                e(f"s_cbranch_vccz L_skip_{it}_{s}")
                e(f"v_max_f32 v{vT}, v{vS}, v{vM}")
                e(f"v_sub_f32 v{vT+1}, v{vM}, v{vT}")
                e(f"v_exp_f32 v{vW}, v{vT+1}")
                e(f"v_mov_b32 v{vM}, v{vT}")
                for i in range(6):
                    e(f"v_pk_mul_f32 v[{vAcc+2*i}:{vAcc+2*i+1}], v[{vAcc+2*i}:{vAcc+2*i+1}], v[{vW}:{vW+1}] op_sel_hi:[1,0]")
                e(f"v_mul_f32 v{vL}, v{vL}, v{vW}")
                e(f"v_mul_f32 v{vC}, v{vC}, v{vW}")
                e.lab(f"L_skip_{it}_{s}")
                e(f"v_sub_f32 v{vT}, v{vS}, v{vM}")
                e(f"v_exp_f32 v{vT}, v{vT}")
                e("s_nop 0")
                e(f"v_add_f32 v{vL}, v{vL}, v{vT}")
                e(f"v_mul_f32_dpp v{vW}, v{vVS}, v{vT} row_newbcast:{s} row_mask:0xf bank_mask:0xf")
                e(f"v_fmac_f32_dpp v{vC}, v{vWZ}, v{vT} row_newbcast:{s} row_mask:0xf bank_mask:0xf")
                for i in range(6):
                    e(f"v_pk_fma_f32 v[{vAcc+2*i}:{vAcc+2*i+1}], v[{v+2*i}:{v+2*i+1}], v[{vW}:{vW+1}], v[{vAcc+2*i}:{vAcc+2*i+1}] op_sel_hi:[1,0,1]")
            issue("V", slot, ("V", nit, ns % 16))
            e(f"s_add_u32 s{sPf}, s{sPf}, {tile_jump if (ns % 16) == 15 else 3072}")
        return counts

    e.lab("L_loop")
    c0 = body(0, True)
    keep = len(e.l)
    c1 = body(1, False)
    del e.l[keep:]
    assert c0 == c1, (c0, c1)
    e(f"s_sub_u32 s{sTile}, s{sTile}, 1")
    e(f"s_cmp_lg_u32 s{sTile}, 0")
    e("s_cbranch_scc1 L_loop")
    e("s_waitcnt vmcnt(0)")
    e(f"s_mul_i32 s30, s{sWv}, 3072")
    e(f"v_add_u32 v{vT}, s30, v{vOffK}")
    for i in range(3):
        e(f"ds_write_b128 v{vT}, v[{vAcc+4*i}:{vAcc+4*i+3}] offset:{256*i}")
    e("v_lshrrev_b32 v10, 4, v0")
    e(f"s_lshl_b32 s30, s{sWv}, 2")
    e("v_add_u32 v10, s30, v10")
    e("v_lshlrev_b32 v10, 4, v10")
    e(f"v_mov_b32 v20, v{vM}")
    e(f"v_mov_b32 v21, v{vL}")
    e(f"v_mov_b32 v22, v{vC}")
    e(f"v_mov_b32 v23, 0")
    e(f"ds_write_b128 v10, v[20:23] offset:{lds_stat}")
    e("s_waitcnt lgkmcnt(0)")
    e("s_barrier")
    e(f"s_cmp_ge_u32 s{sWv}, 3")
    e("s_cbranch_scc1 L_end1")
    NP = W * 4
    e(f"s_lshl_b32 s30, s{sWv}, 6")
    e("v_add_u32 v0, s30, v0")
    e("v_lshlrev_b32 v1, 2, v0")
    e("v_mov_b32 v2, 0")
    st = 42
    e(f"v_mov_b32 v3, 0xff800000")
    for g in range(0, NP, 8):
        for i in range(8):
            e(f"ds_read_b32 v{10+i}, v2 offset:{lds_stat + (g+i)*16}")
        e("s_waitcnt lgkmcnt(0)")
        for i in range(0, 8, 2):
            e(f"v_max3_f32 v3, v3, v{10+i}, v{11+i}")
    e("v_mov_b32 v4, 0")
    e("v_mov_b32 v5, 0")
    for g in range(0, NP, 4):
        for i in range(4):
            e(f"ds_read_b128 v[{12+4*i}:{15+4*i}], v2 offset:{lds_stat + (g+i)*16}")
            e(f"ds_read_b32 v{28+i}, v1 offset:{(g+i)*768}")
        e("s_waitcnt lgkmcnt(0)")
        for i in range(4):
            e(f"v_sub_f32 v{12+4*i}, v{12+4*i}, v3")
        for i in range(4):
            e(f"v_exp_f32 v{12+4*i}, v{12+4*i}")
        for i in range(4):
            e(f"v_sub_f32 v{28+i}, v{28+i}, v{14+4*i}")
        for i in range(4):
            e(f"v_fmac_f32 v4, v{12+4*i}, v{13+4*i}")
            e(f"v_fmac_f32 v5, v{12+4*i}, v{28+i}")
    srd(20, 46, NWG * REC)
    e(f"s_mul_i32 s30, s{sH}, {NS}")
    e(f"s_add_u32 s30, s30, s{sJ}")
    e(f"s_mul_i32 s30, s30, {REC}")
    e("buffer_store_dword v5, v1, s[20:23], s30 offen")
    e("v_mov_b32 v6, v3")
    e("v_mov_b32 v7, v4")
    e("v_cmp_eq_u32 vcc, 0, v0")
    e("s_and_saveexec_b64 s[30:31], vcc")
    e("s_cbranch_execz L_end1")
    e(f"s_mul_i32 s33, s{sH}, {NS}")
    e(f"s_add_u32 s33, s33, s{sJ}")
    e(f"s_mul_i32 s33, s33, {REC}")
    e("buffer_store_dwordx2 v[6:7], v2, s[20:23], s33 offen offset:768")
    e.lab("L_end1")
    e("s_endpgm")

    e.raw(f".globl {K2}")
    e.raw(".p2align 8")
    e.raw(f".type {K2},@function")
    e.lab(K2)
    e("s_cmp_ge_u32 s2, 32")
    e("s_cbranch_scc1 L_end2")
    e("s_load_dwordx2 s[8:9], s[0:1], 56")
    e("s_load_dwordx2 s[10:11], s[0:1], 72")
    e("v_lshrrev_b32 v1, 6, v0")
    e("v_and_b32 v2, 63, v0")
    e("v_readfirstlane_b32 s3, v1")
    e("s_cmp_ge_u32 s3, 3")
    e("s_cbranch_scc1 L_end2")
    e("v_lshlrev_b32 v1, 2, v0")
    e(f"v_min_u32 v2, {min(NS,64)-1}, v2")
    e(f"v_lshlrev_b32 v2, 10, v2")
    e(f"s_mul_i32 s12, s2, {NS*REC}")
    e("s_waitcnt lgkmcnt(0)")
    srd(4, 10, NWG * REC)
    srd(16, 8, H * DH * 2)
    NG = (NS + 63) // 64
    for g in range(NG):
        e(f"s_add_u32 s13, s12, {g*64*REC}")
        e(f"buffer_load_dwordx2 v[{4+2*g}:{5+2*g}], v2, s[4:7], s13 offen offset:768")
    ob = 16
    for j in range(NS):
        if j % 4 == 0:
            e(f"s_add_u32 s13, s12, {j*REC}")
        e(f"buffer_load_dword v{ob+j}, v1, s[4:7], s13 offen offset:{(j%4)*REC}")
    e(f"s_waitcnt vmcnt({min(NS,63)})") if NS <= 63 else e("s_waitcnt vmcnt(63)")
    if NS > 63:
        pass
    e("v_mov_b32 v3, v4")
    for g in range(1, NG):
        e(f"v_max_f32 v3, v3, v{4+2*g}")
    e("s_nop 1")
    for rot in (8, 4, 2, 1):
        e(f"v_max_f32_dpp v3, v3, v3 row_ror:{rot} row_mask:0xf bank_mask:0xf")
        e("s_nop 1")
    e("v_readlane_b32 s20, v3, 0")
    e("v_readlane_b32 s21, v3, 16")
    e("v_readlane_b32 s22, v3, 32")
    e("v_readlane_b32 s23, v3, 48")
    e("s_nop 1")
    e("v_mov_b32 v3, s20")
    e("v_max_f32 v3, s21, v3")
    e("v_max_f32 v3, s22, v3")
    e("v_max_f32 v3, s23, v3")
    for g in range(NG):
        e(f"v_sub_f32 v{4+2*g}, v{4+2*g}, v3")
    for g in range(NG):
        e(f"v_exp_f32 v{4+2*g}, v{4+2*g}")
    e("s_nop 0")
    for g in range(NG):
        e(f"v_mul_f32 v{5+2*g}, v{5+2*g}, v{4+2*g}")
    e("v_mov_b32 v12, 0")
    e("v_mov_b32 v13, 0")
    e("s_waitcnt vmcnt(0)")
    for j in range(NS):
        g, ln = j // 64, j % 64
        sa, sb = 24 + 2 * (j % 4), 25 + 2 * (j % 4)
        e(f"v_readlane_b32 s{sa}, v{4+2*g}, {ln}")
        e(f"v_readlane_b32 s{sb}, v{5+2*g}, {ln}")
        e("s_nop 1")
        e(f"v_fmac_f32 v12, s{sa}, v{ob+j}")
        e(f"v_add_f32 v13, s{sb}, v13")
    e("v_rcp_f32 v13, v13")
    e("s_nop 0")
    e("v_mul_f32 v12, v12, v13")
    e("v_cvt_pk_bf16_f32 v12, v12, v12")
    e("v_lshlrev_b32 v1, 1, v0")
    e("s_mul_i32 s13, s2, 384")
    e("buffer_store_short v12, v1, s[16:19], s13 offen")
    e.lab("L_end2")
    e("s_endpgm")
    nv2 = ob + NS
    e.raw('.section .rodata,"a"')
    for name, n in ((K1, max(nv, 42)), (K2, nv2)):
        e.raw(".p2align 6")
        e.raw(f".amdhsa_kernel {name}")
        e.raw(f"  .amdhsa_next_free_vgpr {n}")
        e.raw(f"  .amdhsa_next_free_sgpr 64")
        e.raw(f"  .amdhsa_accum_offset {(n+3)//4*4}")
        e.raw("  .amdhsa_group_segment_fixed_size 0")
        e.raw("  .amdhsa_kernarg_size 80")
        e.raw("  .amdhsa_user_sgpr_count 2")
        e.raw("  .amdhsa_user_sgpr_kernarg_segment_ptr 1")
        e.raw("  .amdhsa_system_sgpr_workgroup_id_x 1")
        e.raw(".end_amdhsa_kernel")
    return hdr + e.text()

if __name__ == "__main__":
    ap = argparse.ArgumentParser()
    ap.add_argument("-W", type=int, default=4)
    ap.add_argument("-N", type=int, default=1024)
    ap.add_argument("-D", type=int, default=2)
    ap.add_argument("--pol", default="nt")
    ap.add_argument("--jmajor", action="store_true")
    ap.add_argument("--wavecontig", action="store_true")
    ap.add_argument("--nocompute", action="store_true")
    ap.add_argument("-o", default="-")
    a = ap.parse_args()
    t = gen(W=a.W, NWG=a.N, D=a.D, pol=a.pol, hmajor=not a.jmajor, wavecontig=a.wavecontig, nocompute=a.nocompute)
    if a.o == "-":
        sys.stdout.write(t)
    else:
        open(a.o, "w").write(t)
```

```python
import sys, math, struct, argparse

NAME = "standalone__kv_cache_quant_int4_int2_kv_with_per_channel_or_per_token_scales__decode"
HEADER = """; Kernarg layout for this problem (80 bytes, ptrs only, base s[0:1]):
"""

def f2u(x):
    return struct.unpack("<I", struct.pack("<f", x))[0]

H = 32; S = 32768; DH = 192; ROWB = DH * 4
KVBYTES = H * S * ROWB
HEADB = S * ROWB
REC = 1024

class Em:
    def __init__(self):
        self.l = []
    def __call__(self, s):
        self.l.append("    " + s)
    def lab(self, s):
        self.l.append(s + ":")
    def raw(self, s):
        self.l.append(s)
    def text(self):
        return "\n".join(self.l) + "\n"

def gen(W=4, NWG=1024, D=2, pol="nt", hmajor=True, wavecontig=False, noload=False, nocompute=False, stamp=False, tstamp=0):
    NS = NWG // H
    T = S // NS
    NT = T // (64 * W)
    assert NT >= 1 and NT * 64 * W == T and T <= S // 2
    pf = (" " + pol) if pol else ""
    e = Em()
    K1 = NAME + "_kernel"
    K2 = "combine_kernel"
    lds_stat = W * 4 * 768
    lds = lds_stat + W * 4 * 16
    hdr = HEADER
    hdr += f"; @launch kernel={K1} grid=({NWG},1,1) block=({64*W},1,1) lds={lds}\n"
    hdr += f"; @launch kernel={K2} grid=(32,1,1) block=(256,1,1) lds=0\n"
    e.raw('.amdgcn_target "amdgcn-amd-amdhsa--gfx950"')
    e.raw(".text")
    e.raw(f".globl {K1}")
    e.raw(".p2align 8")
    e.raw(f".type {K1},@function")
    e.lab(K1)
    vOffK, vOffS, vM, vL, vC, vVS, vWZ, vVSN, vVZN = 1, 2, 3, 4, 5, 6, 7, 8, 9
    vS, vW, vT = 10, 12, 14
    vAcc, vCoef, vNB = 16, 28, 40
    vRing = 42
    nv = vRing + 24 * D
    def KR(slot): return vRing + 24 * slot
    def VR(slot): return vRing + 24 * slot + 12
    sPf, sVs, sTile, sH, sJ, sWv = 24, 25, 26, 27, 28, 29
    e(f"s_cmp_ge_u32 s2, {NWG}")
    e("s_cbranch_scc1 L_end1")
    if stamp:
        e("s_memrealtime s[60:61]")
    e("s_load_dwordx4 s[32:35], s[0:1], 0")
    e("s_load_dwordx4 s[36:39], s[0:1], 16")
    e("s_load_dwordx4 s[40:43], s[0:1], 32")
    e("s_load_dwordx2 s[44:45], s[0:1], 48")
    e("s_load_dwordx2 s[46:47], s[0:1], 72")
    lg = int(math.log2(NS)); assert 1 << lg == NS
    if hmajor:
        e(f"s_lshr_b32 s{sH}, s2, {lg}")
        e(f"s_and_b32 s{sJ}, s2, {NS-1}")
    else:
        e(f"s_and_b32 s{sH}, s2, 31")
        e(f"s_lshr_b32 s{sJ}, s2, 5")
    e("v_lshrrev_b32 v14, 6, v0")
    e("v_and_b32 v0, 63, v0")
    e(f"v_readfirstlane_b32 s{sWv}, v14")
    e("v_lshrrev_b32 v14, 4, v0")
    e("v_and_b32 v15, 15, v0")
    e(f"v_mul_u32_u24 v{vOffK}, {ROWB}, v14")
    e(f"v_lshl_add_u32 v{vOffK}, v15, 4, v{vOffK}")
    e(f"v_lshlrev_b32 v{vOffS}, 3, v15")
    e(f"v_lshl_add_u32 v{vOffS}, v14, 1, v{vOffS}")
    e(f"v_lshlrev_b32 v13, 3, v15")
    e(f"s_lshl_b32 s30, s{sH}, 15")
    e(f"s_mul_i32 s31, s{sJ}, {T}")
    e("s_add_u32 s30, s30, s31")
    e(f"s_mul_i32 s31, s{sWv}, {64*NT if wavecontig else 64}")
    e("s_add_u32 s30, s30, s31")
    e(f"s_mul_i32 s{sPf}, s30, {ROWB}")
    e(f"s_lshl_b32 s{sVs}, s30, 1")
    e(f"s_mul_i32 s31, s{sJ}, {T}")
    e("s_lshr_b32 s31, s31, 14")
    e("s_mul_i32 s31, s31, 384")
    e(f"s_mul_i32 s48, s{sH}, 768")
    e("s_add_u32 s48, s48, s31")
    e(f"s_mul_i32 s49, s{sH}, 384")
    e(f"v_mov_b32 v{vVSN}, 0")
    e(f"v_mov_b32 v{vVZN}, 0")
    e("s_waitcnt lgkmcnt(0)")
    def srd(d, lo, n):
        e(f"s_mov_b32 s{d}, s{lo}")
        e(f"s_and_b32 s{d+1}, s{lo+1}, 0xffff")
        e(f"s_mov_b32 s{d+2}, {n}")
        e(f"s_mov_b32 s{d+3}, 0x20000")
    srd(4, 34, KVBYTES)
    srd(8, 36, KVBYTES)
    srd(12, 42, H * S * 2)
    srd(16, 44, H * S * 2)
    q = []
    srd(20, 32, H * DH * 2)
    for i in range(3):
        e(f"buffer_load_dwordx2 v[{16+2*i}:{17+2*i}], v13, s[20:23], s49 offen offset:{128*i}"); q.append("small")
    srd(52, 38, H * 2 * DH * 2)
    for i in range(3):
        e(f"buffer_load_dwordx2 v[{22+2*i}:{23+2*i}], v13, s[52:55], s48 offen offset:{128*i}"); q.append("small")
    srd(56, 40, H * 2 * DH * 2)
    for i in range(3):
        e(f"buffer_load_dwordx2 v[{28+2*i}:{29+2*i}], v13, s[56:59], s48 offen offset:{128*i}"); q.append("small")

    tile_jump = 3072 if wavecontig else 3072 + (W - 1) * 64 * ROWB
    vs_jump = 128 if wavecontig else 128 * W

    def issue_vs():
        e(f"buffer_load_short_d16_hi v{vVSN}, v{vOffS}, s[12:15], s{sVs} offen"); q.append("vs")
        e(f"buffer_load_short_d16_hi v{vVZN}, v{vOffS}, s[16:19], s{sVs} offen"); q.append("vs")
        e(f"s_add_u32 s{sVs}, s{sVs}, {vs_jump}")
    def issue(kind, slot, tag):
        base = KR(slot) if kind == "K" else VR(slot)
        sr = "s[4:7]" if kind == "K" else "s[8:11]"
        for i in range(3):
            e(f"buffer_load_dwordx4 v[{base+4*i}:{base+4*i+3}], v{vOffK}, {sr}, s{sPf} offen offset:{256*i}{pf}")
            q.append(tag)
    def wait(tag):
        idx = max(i for i, t in enumerate(q) if t == tag)
        n = len(q) - 1 - idx
        del q[:idx + 1]
        e(f"s_waitcnt vmcnt({n})")
        return n
    issue_vs()
    for s in range(D):
        issue("K", s, ("K", 0, s))
        issue("V", s, ("V", 0, s))
        e(f"s_add_u32 s{sPf}, s{sPf}, {tile_jump if s == 15 else 3072}")
    wait("small")
    CS = (DH ** -0.5) * math.log2(math.e)
    e(f"s_mov_b32 s50, 0x{f2u(CS):08x}")
    e(f"v_mov_b32 v{vNB}, 0")
    e(f"v_mov_b32 v{vNB+1}, 0")
    for i in range(6):
        qr, kr, zr = 16 + i, 22 + i, 28 + i
        e(f"v_lshlrev_b32 v10, 16, v{qr}")
        e(f"v_and_b32 v11, 0xffff0000, v{qr}")
        e(f"v_lshlrev_b32 v12, 16, v{kr}")
        e(f"v_and_b32 v13, 0xffff0000, v{kr}")
        e(f"v_lshlrev_b32 v14, 16, v{zr}")
        e(f"v_and_b32 v15, 0xffff0000, v{zr}")
        e(f"v_mul_f32 v10, v10, v12")
        e(f"v_mul_f32 v11, v11, v13")
        e(f"v_mul_f32 v{qr}, s50, v10")
        e(f"v_mul_f32 v{kr}, s50, v11")
        e(f"v_fma_f32 v{vNB}, -v{qr}, v14, v{vNB}")
        e(f"v_fma_f32 v{vNB+1}, -v{kr}, v15, v{vNB+1}")
    for i in range(6):
        e(f"v_mov_b32 v{vCoef+2*i}, v{16+i}")
        e(f"v_mov_b32 v{vCoef+2*i+1}, v{22+i}")
    for i in range(12):
        e(f"v_mov_b32 v{vAcc+i}, 0")
    e(f"v_mov_b32 v{vM}, 0xff800000")
    e(f"v_mov_b32 v{vL}, 0")
    e(f"v_mov_b32 v{vC}, 0")
    e(f"s_mov_b32 s{sTile}, {NT}")
    if tstamp:
        srd(64, 46, 256 << 20)
        e(f"s_mul_i32 s68, s2, {W}")
        e(f"s_add_u32 s68, s68, s{sWv}")
        e(f"s_mul_i32 s68, s68, {4 * NT * 16 // tstamp}")
        e(f"s_add_u32 s68, s68, {65 << 20}")

    def body(it, emit_lines):
        counts = []
        for s in range(16):
            slot = s % D if (16 % D == 0) else None
            assert slot is not None, "D must divide 16"
            k = KR(slot); v = VR(slot)
            counts.append(wait(("K", it, s)))
            if s == 0:
                e(f"v_mov_b32 v{vVS}, v{vVSN}")
                e(f"v_mul_f32 v{vWZ}, v{vVSN}, v{vVZN}")
            if not nocompute:
                for i in range(12):
                    e(f"v_cvt_f32_i32 v{k+i}, v{k+i}")
                e(f"v_pk_fma_f32 v[{vS}:{vS+1}], v[{k}:{k+1}], v[{vCoef}:{vCoef+1}], v[{vNB}:{vNB+1}]")
                for i in range(1, 6):
                    e(f"v_pk_fma_f32 v[{vS}:{vS+1}], v[{k+2*i}:{k+2*i+1}], v[{vCoef+2*i}:{vCoef+2*i+1}], v[{vS}:{vS+1}]")
                e(f"v_add_f32 v{vS}, v{vS}, v{vS+1}")
            ns = s + D
            nit = it + (1 if ns >= 16 else 0)
            if ns == 16:
                e(f"s_cmp_eq_u32 s{sTile}, 1")
                e(f"s_cselect_b32 s6, 0, s6")
                e(f"s_cselect_b32 s10, 0, s10")
                e(f"s_cselect_b32 s14, 0, s14")
                e(f"s_cselect_b32 s18, 0, s18")
                issue_vs()
            issue("K", slot, ("K", nit, ns % 16))
            counts.append(wait(("V", it, s)))
            if not nocompute:
                cv = [f"v_cvt_f32_i32 v{v+i}, v{v+i}" for i in range(12)]
                for j, rot in enumerate((8, 4, 2, 1)):
                    e(f"v_add_f32_dpp v{vS}, v{vS}, v{vS} row_ror:{rot} row_mask:0xf bank_mask:0xf")
                    if j < 3:
                        e(cv.pop(0)); e(cv.pop(0))
                e(f"v_cmp_gt_f32 vcc, v{vS}, v{vM}")
                for c_ in cv: e(c_)
                e(f"s_cbranch_vccz L_skip_{it}_{s}")
                e(f"v_max_f32 v{vT}, v{vS}, v{vM}")
                e(f"v_sub_f32 v{vT+1}, v{vM}, v{vT}")
                e(f"v_exp_f32 v{vW}, v{vT+1}")
                e(f"v_mov_b32 v{vM}, v{vT}")
                for i in range(6):
                    e(f"v_pk_mul_f32 v[{vAcc+2*i}:{vAcc+2*i+1}], v[{vAcc+2*i}:{vAcc+2*i+1}], v[{vW}:{vW+1}] op_sel_hi:[1,0]")
                e(f"v_mul_f32 v{vL}, v{vL}, v{vW}")
                e(f"v_mul_f32 v{vC}, v{vC}, v{vW}")
                e.lab(f"L_skip_{it}_{s}")
                e(f"v_sub_f32 v{vT}, v{vS}, v{vM}")
                e(f"v_exp_f32 v{vT}, v{vT}")
                e("s_nop 0")
                e(f"v_add_f32 v{vL}, v{vL}, v{vT}")
                e(f"v_mul_f32_dpp v{vW}, v{vVS}, v{vT} row_newbcast:{s} row_mask:0xf bank_mask:0xf")
                e(f"v_fmac_f32_dpp v{vC}, v{vWZ}, v{vT} row_newbcast:{s} row_mask:0xf bank_mask:0xf")
                for i in range(6):
                    e(f"v_pk_fma_f32 v[{vAcc+2*i}:{vAcc+2*i+1}], v[{v+2*i}:{v+2*i+1}], v[{vW}:{vW+1}], v[{vAcc+2*i}:{vAcc+2*i+1}] op_sel_hi:[1,0,1]")
            issue("V", slot, ("V", nit, ns % 16))
            if tstamp and s % tstamp == tstamp - 1:
                e("s_memrealtime s[70:71]")
                e("s_waitcnt lgkmcnt(0)")
                e(f"v_mov_b32 v{vT}, s70")
                e(f"v_mov_b32 v{vT+1}, 0")
                e(f"buffer_store_dword v{vT}, v{vT+1}, s[64:67], s68 offen"); q.append("st")
                e("s_add_u32 s68, s68, 4")
            e(f"s_add_u32 s{sPf}, s{sPf}, {tile_jump if (ns % 16) == 15 else 3072}")
        return counts

    e.lab("L_loop")
    c0 = body(0, True)
    keep = len(e.l)
    c1 = body(1, False)
    del e.l[keep:]
    assert all(a <= b for a, b in zip(c0, c1)) and (tstamp or c0 == c1), (c0, c1)
    e(f"s_sub_u32 s{sTile}, s{sTile}, 1")
    e(f"s_cmp_lg_u32 s{sTile}, 0")
    e("s_cbranch_scc1 L_loop")
    e("s_waitcnt vmcnt(0)")
    if stamp:
        e("s_memrealtime s[62:63]")
        e("s_getreg_b32 s30, hwreg(HW_REG_XCC_ID)")
        e("s_getreg_b32 s31, hwreg(HW_REG_HW_ID)")
        e("s_waitcnt lgkmcnt(0)")
        e("v_mov_b32 v44, s60")
        e("v_mov_b32 v45, s62")
        e("v_mov_b32 v46, s30")
        e("v_mov_b32 v47, s31")
        srd(20, 46, 128 << 20)
        e(f"s_mul_i32 s30, s2, {W}")
        e(f"s_add_u32 s30, s30, s{sWv}")
        e("s_lshl_b32 s30, s30, 4")
        e(f"s_add_u32 s30, s30, {64 << 20}")
        e("v_mov_b32 v48, 0")
        e("buffer_store_dwordx4 v[44:47], v48, s[20:23], s30 offen")
    e(f"s_mul_i32 s30, s{sWv}, 3072")
    e(f"v_add_u32 v{vT}, s30, v{vOffK}")
    for i in range(3):
        e(f"ds_write_b128 v{vT}, v[{vAcc+4*i}:{vAcc+4*i+3}] offset:{256*i}")
    e("v_lshrrev_b32 v10, 4, v0")
    e(f"s_lshl_b32 s30, s{sWv}, 2")
    e("v_add_u32 v10, s30, v10")
    e("v_lshlrev_b32 v10, 4, v10")
    e(f"v_mov_b32 v20, v{vM}")
    e(f"v_mov_b32 v21, v{vL}")
    e(f"v_mov_b32 v22, v{vC}")
    e(f"v_mov_b32 v23, 0")
    e(f"ds_write_b128 v10, v[20:23] offset:{lds_stat}")
    e("s_waitcnt lgkmcnt(0)")
    e("s_barrier")
    e(f"s_cmp_ge_u32 s{sWv}, 3")
    e("s_cbranch_scc1 L_end1")
    NP = W * 4
    e(f"s_lshl_b32 s30, s{sWv}, 6")
    e("v_add_u32 v0, s30, v0")
    e("v_lshlrev_b32 v1, 2, v0")
    e("v_mov_b32 v2, 0")
    st = 42
    e(f"v_mov_b32 v3, 0xff800000")
    for g in range(0, NP, 8):
        for i in range(8):
            e(f"ds_read_b32 v{10+i}, v2 offset:{lds_stat + (g+i)*16}")
        e("s_waitcnt lgkmcnt(0)")
        for i in range(0, 8, 2):
            e(f"v_max3_f32 v3, v3, v{10+i}, v{11+i}")
    e("v_mov_b32 v4, 0")
    e("v_mov_b32 v5, 0")
    for g in range(0, NP, 4):
        for i in range(4):
            e(f"ds_read_b128 v[{12+4*i}:{15+4*i}], v2 offset:{lds_stat + (g+i)*16}")
            e(f"ds_read_b32 v{28+i}, v1 offset:{(g+i)*768}")
        e("s_waitcnt lgkmcnt(0)")
        for i in range(4):
            e(f"v_sub_f32 v{12+4*i}, v{12+4*i}, v3")
        for i in range(4):
            e(f"v_exp_f32 v{12+4*i}, v{12+4*i}")
        for i in range(4):
            e(f"v_sub_f32 v{28+i}, v{28+i}, v{14+4*i}")
        for i in range(4):
            e(f"v_fmac_f32 v4, v{12+4*i}, v{13+4*i}")
            e(f"v_fmac_f32 v5, v{12+4*i}, v{28+i}")
    srd(20, 46, NWG * REC)
    e(f"s_mul_i32 s30, s{sH}, {NS}")
    e(f"s_add_u32 s30, s30, s{sJ}")
    e(f"s_mul_i32 s30, s30, {REC}")
    e("buffer_store_dword v5, v1, s[20:23], s30 offen")
    e("v_mov_b32 v6, v3")
    e("v_mov_b32 v7, v4")
    e("v_cmp_eq_u32 vcc, 0, v0")
    e("s_and_saveexec_b64 s[30:31], vcc")
    e("s_cbranch_execz L_end1")
    e(f"s_mul_i32 s33, s{sH}, {NS}")
    e(f"s_add_u32 s33, s33, s{sJ}")
    e(f"s_mul_i32 s33, s33, {REC}")
    e("buffer_store_dwordx2 v[6:7], v2, s[20:23], s33 offen offset:768")
    e.lab("L_end1")
    e("s_endpgm")

    e.raw(f".globl {K2}")
    e.raw(".p2align 8")
    e.raw(f".type {K2},@function")
    e.lab(K2)
    e("s_cmp_ge_u32 s2, 32")
    e("s_cbranch_scc1 L_end2")
    e("s_load_dwordx2 s[8:9], s[0:1], 56")
    e("s_load_dwordx2 s[10:11], s[0:1], 72")
    e("v_lshrrev_b32 v1, 6, v0")
    e("v_and_b32 v2, 63, v0")
    e("v_readfirstlane_b32 s3, v1")
    e("s_cmp_ge_u32 s3, 3")
    e("s_cbranch_scc1 L_end2")
    e("v_lshlrev_b32 v1, 2, v0")
    e(f"v_min_u32 v2, {min(NS,64)-1}, v2")
    e(f"v_lshlrev_b32 v2, 10, v2")
    e(f"s_mul_i32 s12, s2, {NS*REC}")
    e("s_waitcnt lgkmcnt(0)")
    srd(4, 10, NWG * REC)
    srd(16, 8, H * DH * 2)
    NG = (NS + 63) // 64
    for g in range(NG):
        e(f"s_add_u32 s13, s12, {g*64*REC}")
        e(f"buffer_load_dwordx2 v[{4+2*g}:{5+2*g}], v2, s[4:7], s13 offen offset:768")
    ob = 16
    for j in range(NS):
        if j % 4 == 0:
            e(f"s_add_u32 s13, s12, {j*REC}")
        e(f"buffer_load_dword v{ob+j}, v1, s[4:7], s13 offen offset:{(j%4)*REC}")
    e(f"s_waitcnt vmcnt({min(NS,63)})") if NS <= 63 else e("s_waitcnt vmcnt(63)")
    if NS > 63:
        pass
    e("v_mov_b32 v3, v4")
    for g in range(1, NG):
        e(f"v_max_f32 v3, v3, v{4+2*g}")
    e("s_nop 1")
    for rot in (8, 4, 2, 1):
        e(f"v_max_f32_dpp v3, v3, v3 row_ror:{rot} row_mask:0xf bank_mask:0xf")
        e("s_nop 1")
    e("v_readlane_b32 s20, v3, 0")
    e("v_readlane_b32 s21, v3, 16")
    e("v_readlane_b32 s22, v3, 32")
    e("v_readlane_b32 s23, v3, 48")
    e("s_nop 1")
    e("v_mov_b32 v3, s20")
    e("v_max_f32 v3, s21, v3")
    e("v_max_f32 v3, s22, v3")
    e("v_max_f32 v3, s23, v3")
    for g in range(NG):
        e(f"v_sub_f32 v{4+2*g}, v{4+2*g}, v3")
    for g in range(NG):
        e(f"v_exp_f32 v{4+2*g}, v{4+2*g}")
    e("s_nop 0")
    for g in range(NG):
        e(f"v_mul_f32 v{5+2*g}, v{5+2*g}, v{4+2*g}")
    e("v_mov_b32 v12, 0")
    e("v_mov_b32 v13, 0")
    e("s_waitcnt vmcnt(0)")
    for j in range(NS):
        g, ln = j // 64, j % 64
        sa, sb = 24 + 2 * (j % 4), 25 + 2 * (j % 4)
        e(f"v_readlane_b32 s{sa}, v{4+2*g}, {ln}")
        e(f"v_readlane_b32 s{sb}, v{5+2*g}, {ln}")
        e("s_nop 1")
        e(f"v_fmac_f32 v12, s{sa}, v{ob+j}")
        e(f"v_add_f32 v13, s{sb}, v13")
    e("v_rcp_f32 v13, v13")
    e("s_nop 0")
    e("v_mul_f32 v12, v12, v13")
    e("v_cvt_pk_bf16_f32 v12, v12, v12")
    e("v_lshlrev_b32 v1, 1, v0")
    e("s_mul_i32 s13, s2, 384")
    e("buffer_store_short v12, v1, s[16:19], s13 offen")
    e.lab("L_end2")
    e("s_endpgm")
    nv2 = ob + NS
    e.raw('.section .rodata,"a"')
    for name, n in ((K1, max(nv, 42)), (K2, nv2)):
        e.raw(".p2align 6")
        e.raw(f".amdhsa_kernel {name}")
        e.raw(f"  .amdhsa_next_free_vgpr {n}")
        e.raw(f"  .amdhsa_next_free_sgpr 80")
        e.raw(f"  .amdhsa_accum_offset {(n+3)//4*4}")
        e.raw("  .amdhsa_group_segment_fixed_size 0")
        e.raw("  .amdhsa_kernarg_size 80")
        e.raw("  .amdhsa_user_sgpr_count 2")
        e.raw("  .amdhsa_user_sgpr_kernarg_segment_ptr 1")
        e.raw("  .amdhsa_system_sgpr_workgroup_id_x 1")
        e.raw(".end_amdhsa_kernel")
    return hdr + e.text()

if __name__ == "__main__":
    ap = argparse.ArgumentParser()
    ap.add_argument("-W", type=int, default=4)
    ap.add_argument("-N", type=int, default=1024)
    ap.add_argument("-D", type=int, default=2)
    ap.add_argument("--pol", default="nt")
    ap.add_argument("--jmajor", action="store_true")
    ap.add_argument("--wavecontig", action="store_true")
    ap.add_argument("--nocompute", action="store_true")
    ap.add_argument("-o", default="-")
    a = ap.parse_args()
    t = gen(W=a.W, NWG=a.N, D=a.D, pol=a.pol, hmajor=not a.jmajor, wavecontig=a.wavecontig, nocompute=a.nocompute)
    if a.o == "-":
        sys.stdout.write(t)
    else:
        open(a.o, "w").write(t)
```

```python
import sys, math, struct
from gen import NAME, HEADER, f2u, Em, H, S, DH, ROWB, HEADB, REC

def gen(W=4, NWG=256, n=2, pol="nt", rot=48, jm=True, minlds=0, stamp=False, tstamp=0, fused=True, offs=None, prio=0):
    NS = NWG // H
    G = NS * W
    lgG = int(math.log2(G)); assert 1 << lgG == G
    NSTEP = S // 4 // G
    P = n if n % 2 else n // 2
    assert n // 2 + 1 <= 15
    STRIDE = G * 4 * ROWB
    NT = 64
    pf = (" " + pol) if pol else ""
    e = Em()
    K1 = NAME + "_kernel"
    K2 = "combine_kernel"
    lds_stat = W * 4 * 768
    lds_flag = lds_stat + W * 4 * 16
    lds = max(lds_flag + 16, minlds)
    hdr = HEADER
    if fused:
        hdr += f"; @launch grid=({NWG},1,1) block=({64*W},1,1) lds={lds}\n"
    else:
        hdr += f"; @launch kernel={K1} grid=({NWG},1,1) block=({64*W},1,1) lds={lds}\n"
        hdr += f"; @launch kernel={K2} grid=(32,1,1) block=(256,1,1) lds=0\n"
    e.raw('.amdgcn_target "amdgcn-amd-amdhsa--gfx950"')
    e.raw(".text")
    e.raw(f".globl {K1}")
    e.raw(".p2align 8")
    e.raw(f".type {K1},@function")
    e.lab(K1)
    vOffK, vOffS, vM, vL, vC, vVS, vWZ, vVSN, vVZN = 1, 2, 3, 4, 5, 6, 7, 8, 9
    vS, vW, vT = 10, 12, 14
    vAcc, vCoef, vNB = 16, 28, 40
    vCoefB, vNBB = 42, 54
    vA = 56
    vRing = 58
    nv = vRing + 12 * n
    def R(slot): return vRing + 12 * slot
    sPK, sPV, sVs, sH, sJ, sWv = 24, 25, 26, 27, 28, 29
    sIK, sIV, sI, sPos, sM = 72, 73, 74, 75, 78
    e(f"s_cmp_ge_u32 s2, {NWG}")
    e("s_cbranch_scc1 L_end1")
    if stamp:
        e("s_memrealtime s[60:61]")
    e("s_load_dwordx4 s[32:35], s[0:1], 0")
    e("s_load_dwordx4 s[36:39], s[0:1], 16")
    e("s_load_dwordx4 s[40:43], s[0:1], 32")
    e("s_load_dwordx4 s[44:47], s[0:1], 48")
    e("s_load_dwordx4 s[80:83], s[0:1], 64")
    if prio:
        e(f"s_setprio {prio}")
    lg = int(math.log2(NS)); assert 1 << lg == NS
    if jm:
        e(f"s_and_b32 s{sH}, s2, 31")
        e(f"s_lshr_b32 s{sJ}, s2, 5")
    else:
        e(f"s_lshr_b32 s{sH}, s2, {lg}")
        e(f"s_and_b32 s{sJ}, s2, {NS-1}")
    e("v_lshrrev_b32 v14, 6, v0")
    e("v_and_b32 v0, 63, v0")
    e(f"v_readfirstlane_b32 s{sWv}, v14")
    e("v_lshrrev_b32 v14, 4, v0")
    e("v_and_b32 v15, 15, v0")
    e(f"v_mul_u32_u24 v{vOffK}, {ROWB}, v14")
    e(f"v_lshl_add_u32 v{vOffK}, v15, 4, v{vOffK}")
    e(f"v_lshlrev_b32 v{vOffS}, {3+lgG}, v15")
    e(f"v_lshl_add_u32 v{vOffS}, v14, 1, v{vOffS}")
    e(f"v_lshlrev_b32 v13, 3, v15")
    e(f"s_mul_i32 s{sM}, s{sJ}, {W}")
    e(f"s_add_u32 s{sM}, s{sM}, s{sWv}")
    if offs is None:
        e(f"s_mul_i32 s{sPos}, s{sH}, {rot}")
    else:
        a, b = offs
        e(f"s_mul_i32 s{sPos}, s{sH}, {b}")
        e(f"s_add_u32 s{sPos}, s{sPos}, {a}")
        e(f"s_mul_i32 s{sPos}, s{sPos}, s{sH}")
    e(f"s_and_b32 s{sPos}, s{sPos}, {NSTEP-1}")
    e(f"s_mul_i32 s{sPK}, s{sPos}, {STRIDE}")
    e(f"s_mul_i32 s30, s{sM}, {4*ROWB}")
    e(f"s_add_u32 s{sPK}, s{sPK}, s30")
    e(f"s_mov_b32 s{sPV}, s{sPK}")
    e(f"s_lshl_b32 s{sVs}, s{sPos}, {3+lgG}")
    e(f"s_lshl_b32 s30, s{sM}, 3")
    e(f"s_add_u32 s{sVs}, s{sVs}, s30")
    e(f"s_mul_i32 s48, s{sH}, 768")
    e(f"s_mul_i32 s49, s{sH}, 384")
    e(f"s_mul_i32 s50, s{sH}, {HEADB}")
    e(f"s_lshl_b32 s51, s{sH}, 16")
    e(f"s_mov_b32 s{sIK}, {NSTEP}")
    e(f"s_mov_b32 s{sIV}, {NSTEP}")
    e(f"s_mov_b32 s{sI}, 0")
    e(f"v_mov_b32 v{vVSN}, 0")
    e(f"v_mov_b32 v{vVZN}, 0")
    e(f"v_add_u32 v{vA}, s{sVs}, v{vOffS}")
    e(f"v_and_b32 v{vA}, 0xffff, v{vA}")
    e(f"s_add_u32 s{sVs}, s{sVs}, {16*8*G}")
    e("s_waitcnt lgkmcnt(0)")
    def srd(d, lo, nrec, add=None):
        if add is None:
            e(f"s_mov_b32 s{d}, s{lo}")
            e(f"s_and_b32 s{d+1}, s{lo+1}, 0xffff")
        else:
            e(f"s_add_u32 s{d}, s{lo}, s{add}")
            e(f"s_addc_u32 s{d+1}, s{lo+1}, 0")
            e(f"s_and_b32 s{d+1}, s{d+1}, 0xffff")
        e(f"s_mov_b32 s{d+2}, {nrec}")
        e(f"s_mov_b32 s{d+3}, 0x20000")
    srd(4, 34, HEADB, 50)
    srd(8, 36, HEADB, 50)
    def issue(kind, slot, first=False):
        base = R(slot)
        sr, sp, si, nr = ("s[4:7]", sPK, sIK, 6) if kind == "K" else ("s[8:11]", sPV, sIV, 10)
        if not first:
            e(f"s_cmp_eq_u32 s{si}, 0")
            e(f"s_cselect_b32 s{nr}, 0, s{nr}")
        for i in range(3):
            e(f"buffer_load_dwordx4 v[{base+4*i}:{base+4*i+3}], v{vOffK}, {sr}, s{sp} offen offset:{256*i}{pf}")
        e(f"s_sub_u32 s{si}, s{si}, 1")
        e(f"s_add_u32 s{sp}, s{sp}, {STRIDE}")
        e(f"s_sub_u32 s30, s{sp}, {HEADB}")
        e(f"s_cselect_b32 s{sp}, s{sp}, s30")
    issue("K", 0, True)
    srd(20, 32, H * DH * 2)
    for i in range(3):
        e(f"buffer_load_dwordx2 v[{16+2*i}:{17+2*i}], v13, s[20:23], s49 offen offset:{128*i}")
    srd(52, 38, H * 2 * DH * 2)
    for i in range(3):
        e(f"buffer_load_dwordx2 v[{22+2*i}:{23+2*i}], v13, s[52:55], s48 offen offset:{128*i}")
    for i in range(3):
        e(f"buffer_load_dwordx2 v[{34+2*i}:{35+2*i}], v13, s[52:55], s48 offen offset:{384+128*i}")
    srd(56, 40, H * 2 * DH * 2)
    for i in range(3):
        e(f"buffer_load_dwordx2 v[{48+2*i}:{49+2*i}], v13, s[56:59], s48 offen offset:{384+128*i}")
    for i in range(3):
        e(f"buffer_load_dwordx2 v[{28+2*i}:{29+2*i}], v13, s[56:59], s48 offen offset:{128*i}")
    srd(12, 42, S * 2, 51)
    srd(16, 44, S * 2, 51)
    e(f"buffer_load_short_d16_hi v{vVSN}, v{vA}, s[12:15], 0 offen")
    e(f"buffer_load_short_d16_hi v{vVZN}, v{vA}, s[16:19], 0 offen")
    for c in range(1, n):
        issue("K" if c % 2 == 0 else "V", c, True)
    e(f"s_waitcnt vmcnt({3*(n-1)})")
    CS = (DH ** -0.5) * math.log2(math.e)
    e(f"s_mov_b32 s50, 0x{f2u(CS):08x}")
    for r_ in (vNB, vNB + 1, vNBB, vNBB + 1):
        e(f"v_mov_b32 v{r_}, 0")
    for i in range(6):
        qr = 16 + i
        e(f"v_lshlrev_b32 v10, 16, v{qr}")
        e(f"v_and_b32 v11, 0xffff0000, v{qr}")
        e(f"v_mul_f32 v10, s50, v10")
        e(f"v_mul_f32 v11, s50, v11")
        for (kr, zr, nb) in ((22 + i, 28 + i, vNB), (34 + i, 48 + i, vNBB)):
            e(f"v_lshlrev_b32 v12, 16, v{kr}")
            e(f"v_and_b32 v13, 0xffff0000, v{kr}")
            e(f"v_lshlrev_b32 v14, 16, v{zr}")
            e(f"v_and_b32 v15, 0xffff0000, v{zr}")
            e(f"v_mul_f32 v{kr}, v10, v12")
            e(f"v_mul_f32 v{zr}, v11, v13")
            e(f"v_fma_f32 v{nb}, -v{kr}, v14, v{nb}")
            e(f"v_fma_f32 v{nb+1}, -v{zr}, v15, v{nb+1}")
    for i in range(6):
        e(f"v_mov_b32 v{16+i}, v{48+i}")
    for i in range(6):
        e(f"v_mov_b32 v{vCoefB+2*i}, v{34+i}")
        e(f"v_mov_b32 v{vCoefB+2*i+1}, v{16+i}")
    for i in range(6):
        e(f"v_mov_b32 v{16+i}, v{28+i}")
    for i in range(6):
        e(f"v_mov_b32 v{vCoef+2*i}, v{22+i}")
        e(f"v_mov_b32 v{vCoef+2*i+1}, v{16+i}")
    e(f"s_sub_u32 s30, s{sPos}, 1")
    e(f"s_and_b32 s30, s30, {NSTEP//2}")
    e("s_cbranch_scc0 L_g0")
    for i in range(14):
        e(f"v_swap_b32 v{vCoef+i}, v{vCoefB+i}")
    e.lab("L_g0")
    for i in range(12):
        e(f"v_mov_b32 v{vAcc+i}, 0")
    e(f"v_mov_b32 v{vM}, 0xff800000")
    e(f"v_mov_b32 v{vL}, 0")
    e(f"v_mov_b32 v{vC}, 0")
    if tstamp:
        srd(64, 82, 256 << 20)
        e(f"s_mul_i32 s68, s2, {W}")
        e(f"s_add_u32 s68, s68, s{sWv}")
        e(f"s_mul_i32 s68, s68, {4 * (NSTEP // tstamp)}")
        e(f"s_add_u32 s68, s68, {65 << 20}")
    ool = Em()
    e.lab("L_loop")
    for i in range(P):
        k = R((2 * i) % n); v = R((2 * i + 1) % n)
        e(f"s_and_b32 s30, s{sPos}, {NSTEP//2-1}")
        e(f"s_cbranch_scc0 L_swap_{i}")
        e.lab(f"L_swapr_{i}")
        ool.lab(f"L_swap_{i}")
        for j in range(14):
            ool(f"v_swap_b32 v{vCoef+j}, v{vCoefB+j}")
        ool(f"s_branch L_swapr_{i}")
        e(f"s_and_b32 s30, s{sI}, 15")
        e(f"s_waitcnt vmcnt({3*(n-1)})")
        e(f"s_cbranch_scc0 L_tile_{i}")
        e.lab(f"L_tiler_{i}")
        ool.lab(f"L_tile_{i}")
        ool(f"v_mov_b32 v{vVS}, v{vVSN}")
        ool(f"v_mul_f32 v{vWZ}, v{vVSN}, v{vVZN}")
        ool(f"v_add_u32 v{vA}, s{sVs}, v{vOffS}")
        ool(f"v_and_b32 v{vA}, 0xffff, v{vA}")
        ool(f"s_add_u32 s{sVs}, s{sVs}, {16*8*G}")
        ool(f"buffer_load_short_d16_hi v{vVSN}, v{vA}, s[12:15], 0 offen")
        ool(f"buffer_load_short_d16_hi v{vVZN}, v{vA}, s[16:19], 0 offen")
        ool(f"s_branch L_tiler_{i}")
        for j in range(12):
            e(f"v_cvt_f32_i32 v{k+j}, v{k+j}")
        e(f"v_pk_fma_f32 v[{vS}:{vS+1}], v[{k}:{k+1}], v[{vCoef}:{vCoef+1}], v[{vNB}:{vNB+1}]")
        for j in range(1, 6):
            e(f"v_pk_fma_f32 v[{vS}:{vS+1}], v[{k+2*j}:{k+2*j+1}], v[{vCoef+2*j}:{vCoef+2*j+1}], v[{vS}:{vS+1}]")
        issue("K" if n % 2 == 0 else "V", (2 * i) % n)
        e(f"v_add_f32 v{vS}, v{vS}, v{vS+1}")
        e(f"s_add_u32 s{sPos}, s{sPos}, 1")
        e(f"s_add_u32 s{sI}, s{sI}, 1")
        for rot_ in (8, 4, 2, 1):
            e(f"v_add_f32_dpp v{vS}, v{vS}, v{vS} row_ror:{rot_} row_mask:0xf bank_mask:0xf")
            if rot_ != 1:
                e("s_nop 1")
        e(f"v_cmp_gt_f32 vcc, v{vS}, v{vM}")
        e(f"s_waitcnt vmcnt({3*(n-1)})")
        cv = [f"v_cvt_f32_i32 v{v+j}, v{v+j}" for j in range(12)]
        for _ in range(4): e(cv.pop(0))
        e(f"s_cbranch_vccnz L_resc_{i}")
        e.lab(f"L_rescr_{i}")
        ool.lab(f"L_resc_{i}")
        ool(f"v_max_f32 v{vT}, v{vS}, v{vM}")
        ool(f"v_sub_f32 v{vT+1}, v{vM}, v{vT}")
        ool(f"v_exp_f32 v{vW}, v{vT+1}")
        ool(f"v_mov_b32 v{vM}, v{vT}")
        for j in range(6):
            ool(f"v_pk_mul_f32 v[{vAcc+2*j}:{vAcc+2*j+1}], v[{vAcc+2*j}:{vAcc+2*j+1}], v[{vW}:{vW+1}] op_sel_hi:[1,0]")
        ool(f"v_mul_f32 v{vL}, v{vL}, v{vW}")
        ool(f"v_mul_f32 v{vC}, v{vC}, v{vW}")
        ool(f"s_branch L_rescr_{i}")
        e(f"v_sub_f32 v{vT}, v{vS}, v{vM}")
        e(f"v_exp_f32 v{vT}, v{vT}")
        for c_ in cv: e(c_)
        e(f"v_add_f32 v{vL}, v{vL}, v{vT}")
        e(f"v_mul_f32_dpp v{vW}, v{vVS}, v{vT} row_newbcast:0 row_mask:0xf bank_mask:0xf")
        e(f"v_fmac_f32_dpp v{vC}, v{vWZ}, v{vT} row_newbcast:0 row_mask:0xf bank_mask:0xf")
        e(f"v_mov_b32_dpp v{vVS}, v{vVS} row_ror:15 row_mask:0xf bank_mask:0xf")
        e(f"v_mov_b32_dpp v{vWZ}, v{vWZ} row_ror:15 row_mask:0xf bank_mask:0xf")
        for j in range(6):
            e(f"v_pk_fma_f32 v[{vAcc+2*j}:{vAcc+2*j+1}], v[{v+2*j}:{v+2*j+1}], v[{vW}:{vW+1}], v[{vAcc+2*j}:{vAcc+2*j+1}] op_sel_hi:[1,0,1]")
        issue("V" if n % 2 == 0 else "K", (2 * i + 1) % n)
        if tstamp:
            e(f"s_and_b32 s30, s{sI}, {tstamp-1}")
            e(f"s_cbranch_scc1 L_nots_{i}")
            e("s_memrealtime s[70:71]")
            e("s_waitcnt lgkmcnt(0)")
            e(f"v_mov_b32 v{vT}, s70")
            e(f"v_mov_b32 v{vT+1}, 0")
            e(f"buffer_store_dword v{vT}, v{vT+1}, s[64:67], s68 offen")
            e("s_add_u32 s68, s68, 4")
            e.lab(f"L_nots_{i}")
        if i == P - 1:
            e(f"s_cmp_lt_u32 s{sI}, {NSTEP}")
            e("s_cbranch_scc1 L_loop")
        elif NSTEP % P:
            e(f"s_cmp_ge_u32 s{sI}, {NSTEP}")
            e("s_cbranch_scc1 L_done")
    e.lab("L_done")
    if stamp:
        e("s_memrealtime s[62:63]")
        e("s_getreg_b32 s30, hwreg(HW_REG_XCC_ID)")
        e("s_getreg_b32 s31, hwreg(HW_REG_HW_ID)")
        e("s_waitcnt lgkmcnt(0)")
        e("v_mov_b32 v44, s60")
        e("v_mov_b32 v45, s62")
        e("v_mov_b32 v46, s30")
        e("v_mov_b32 v47, s31")
        srd(20, 82, 128 << 20)
        e(f"s_mul_i32 s30, s2, {W}")
        e(f"s_add_u32 s30, s30, s{sWv}")
        e("s_lshl_b32 s30, s30, 4")
        e(f"s_add_u32 s30, s30, {64 << 20}")
        e("v_mov_b32 v48, 0")
        e("buffer_store_dwordx4 v[44:47], v48, s[20:23], s30 offen")
    e(f"s_mul_i32 s30, s{sWv}, 3072")
    e(f"v_add_u32 v{vT}, s30, v{vOffK}")
    for i in range(3):
        e(f"ds_write_b128 v{vT}, v[{vAcc+4*i}:{vAcc+4*i+3}] offset:{256*i}")
    e("v_lshrrev_b32 v10, 4, v0")
    e(f"s_lshl_b32 s30, s{sWv}, 2")
    e("v_add_u32 v10, s30, v10")
    e("v_lshlrev_b32 v10, 4, v10")
    e(f"v_mov_b32 v20, v{vM}")
    e(f"v_mov_b32 v21, v{vL}")
    e(f"v_mov_b32 v22, v{vC}")
    e(f"v_mov_b32 v23, 0")
    e(f"ds_write_b128 v10, v[20:23] offset:{lds_stat}")
    e("s_waitcnt vmcnt(0) lgkmcnt(0)")
    if W > 1:
        e("s_barrier")
        e(f"s_cmp_lg_u32 s{sWv}, 0")
        e("s_cbranch_scc1 L_end1")
    NP = W * 4
    wt = " sc0 sc1" if fused else ""
    e("v_min_u32 v1, 47, v0")
    e("v_lshlrev_b32 v1, 4, v1")
    e("v_mov_b32 v2, 0")
    e(f"v_mov_b32 v3, 0xff800000")
    for i in range(NP):
        e(f"ds_read_b128 v[{16+4*i}:{19+4*i}], v2 offset:{lds_stat + i*16}")
    ob = 16 + 4 * NP
    for i in range(NP):
        e(f"ds_read_b128 v[{ob+4*i}:{ob+3+4*i}], v1 offset:{i*768}")
    e(f"s_waitcnt lgkmcnt({min(NP,15)})")
    for i in range(0, NP, 2):
        e(f"v_max3_f32 v3, v3, v{16+4*i}, v{20+4*i}")
    for i in range(NP):
        e(f"v_sub_f32 v{16+4*i}, v{16+4*i}, v3")
    for i in range(NP):
        e(f"v_exp_f32 v{16+4*i}, v{16+4*i}")
    for r_ in (4, 5, 8, 9, 10, 11):
        e(f"v_mov_b32 v{r_}, 0")
    for i in range(NP):
        e(f"v_fmac_f32 v4, v{16+4*i}, v{17+4*i}")
        e(f"v_fmac_f32 v5, v{16+4*i}, v{18+4*i}")
    e("s_waitcnt lgkmcnt(0)")
    for i in range(NP):
        for d in range(4):
            e(f"v_fmac_f32 v{8+d}, v{16+4*i}, v{ob+4*i+d}")
    for d in range(4):
        e(f"v_sub_f32 v{8+d}, v{8+d}, v5")
    e("v_cmp_eq_u32 vcc, 48, v0")
    e("v_cndmask_b32 v8, v8, v3, vcc")
    e("v_cndmask_b32 v9, v9, v4, vcc")
    e("v_lshlrev_b32 v1, 4, v0")
    srd(20, 82, NWG * REC)
    e(f"s_mul_i32 s30, s{sH}, {NS}")
    e(f"s_add_u32 s30, s30, s{sJ}")
    e(f"s_mul_i32 s30, s30, {REC}")
    e("v_cmp_gt_u32 vcc, 49, v0")
    e("s_and_b64 exec, exec, vcc")
    e(f"buffer_store_dwordx4 v[8:11], v1, s[20:23], s30 offen{wt}")
    nvmax = max(nv, ob + 4 * NP)
    if fused:
        e(f"s_lshl_b32 s31, s{sH}, 3")
        srd(52, 80, 256)
        e("v_mov_b32 v6, 1")
        e("s_waitcnt vmcnt(0)")
        e("s_mov_b64 exec, 1")
        e("buffer_atomic_add v6, off, s[52:55], s31 sc0 sc1")
        e("s_waitcnt vmcnt(0)")
        e("v_readfirstlane_b32 s31, v6")
        e(f"s_cmp_lg_u32 s31, {NS-1}")
        e("s_cbranch_scc1 L_end1")
        e("s_mov_b64 exec, -1")
        e("v_min_u32 v1, 47, v0")
        e("v_lshlrev_b32 v1, 4, v1")
        e("v_mov_b32 v2, 0")
        e(f"s_mul_i32 s30, s{sH}, {NS*REC}")
        sb = 16; rb = 16 + 2 * NS
        for j in range(NS):
            if j % 4 == 0:
                e(f"s_add_u32 s33, s30, {j*REC}")
            e(f"buffer_load_dwordx2 v[{sb+2*j}:{sb+2*j+1}], v2, s[20:23], s33 offen offset:{(j%4)*REC+768} sc0 sc1")
            e(f"buffer_load_dwordx4 v[{rb+4*j}:{rb+4*j+3}], v1, s[20:23], s33 offen offset:{(j%4)*REC} sc0 sc1")
        srd(52, 46, H * DH * 2)
        e(f"v_mov_b32 v3, 0xff800000")
        for r_ in (4, 8, 9, 10, 11):
            e(f"v_mov_b32 v{r_}, 0")
        e("s_waitcnt vmcnt(0)")
        for j in range(0, NS, 2):
            e(f"v_max3_f32 v3, v3, v{sb+2*j}, v{sb+2*j+2}")
        for j in range(NS):
            e(f"v_sub_f32 v{sb+2*j}, v{sb+2*j}, v3")
        for j in range(NS):
            e(f"v_exp_f32 v{sb+2*j}, v{sb+2*j}")
        e("s_nop 0")
        for j in range(NS):
            e(f"v_fmac_f32 v4, v{sb+2*j}, v{sb+2*j+1}")
        e("v_rcp_f32 v4, v4")
        for j in range(NS):
            for d in range(4):
                e(f"v_fmac_f32 v{8+d}, v{sb+2*j}, v{rb+4*j+d}")
        for d in range(4):
            e(f"v_mul_f32 v{8+d}, v{8+d}, v4")
        e("v_cvt_pk_bf16_f32 v8, v8, v9")
        e("v_cvt_pk_bf16_f32 v9, v10, v11")
        e("v_lshlrev_b32 v1, 3, v0")
        e(f"s_mul_i32 s30, s{sH}, 384")
        e("v_cmp_gt_u32 vcc, 48, v0")
        e("s_and_b64 exec, exec, vcc")
        e("buffer_store_dwordx2 v[8:9], v1, s[52:55], s30 offen")
        nvmax = max(nvmax, rb + 4 * NS)
    e.lab("L_end1")
    e("s_endpgm")
    e.l += ool.l
    kern = [(K1, nvmax)]
    if not fused:
        e.raw(f".globl {K2}")
        e.raw(".p2align 8")
        e.raw(f".type {K2},@function")
        e.lab(K2)
        e("s_cmp_ge_u32 s2, 32")
        e("s_cbranch_scc1 L_end2")
        e("s_load_dwordx2 s[8:9], s[0:1], 56")
        e("s_load_dwordx2 s[10:11], s[0:1], 72")
        e("v_lshrrev_b32 v1, 6, v0")
        e("s_nop 0")
        e("v_readfirstlane_b32 s3, v1")
        e("s_cmp_lg_u32 s3, 0")
        e("s_cbranch_scc1 L_end2")
        e("v_min_u32 v1, 47, v0")
        e("v_lshlrev_b32 v1, 4, v1")
        e("v_mov_b32 v2, 0")
        e(f"s_mul_i32 s30, s2, {NS*REC}")
        e("s_waitcnt lgkmcnt(0)")
        srd(20, 10, NWG * REC)
        sb = 16; rb = 16 + 2 * NS
        for j in range(NS):
            if j % 4 == 0:
                e(f"s_add_u32 s33, s30, {j*REC}")
            e(f"buffer_load_dwordx2 v[{sb+2*j}:{sb+2*j+1}], v2, s[20:23], s33 offen offset:{(j%4)*REC+768}")
            e(f"buffer_load_dwordx4 v[{rb+4*j}:{rb+4*j+3}], v1, s[20:23], s33 offen offset:{(j%4)*REC}")
        srd(52, 8, H * DH * 2)
        e(f"v_mov_b32 v3, 0xff800000")
        for r_ in (4, 8, 9, 10, 11):
            e(f"v_mov_b32 v{r_}, 0")
        e("s_waitcnt vmcnt(0)")
        for j in range(0, NS, 2):
            e(f"v_max3_f32 v3, v3, v{sb+2*j}, v{sb+2*j+2}")
        for j in range(NS):
            e(f"v_sub_f32 v{sb+2*j}, v{sb+2*j}, v3")
        for j in range(NS):
            e(f"v_exp_f32 v{sb+2*j}, v{sb+2*j}")
        e("s_nop 0")
        for j in range(NS):
            e(f"v_fmac_f32 v4, v{sb+2*j}, v{sb+2*j+1}")
        e("v_rcp_f32 v4, v4")
        for j in range(NS):
            for d in range(4):
                e(f"v_fmac_f32 v{8+d}, v{sb+2*j}, v{rb+4*j+d}")
        for d in range(4):
            e(f"v_mul_f32 v{8+d}, v{8+d}, v4")
        e("v_cvt_pk_bf16_f32 v8, v8, v9")
        e("v_cvt_pk_bf16_f32 v9, v10, v11")
        e("v_lshlrev_b32 v1, 3, v0")
        e(f"s_mul_i32 s30, s2, 384")
        e("v_cmp_gt_u32 vcc, 48, v0")
        e("s_and_b64 exec, exec, vcc")
        e("buffer_store_dwordx2 v[8:9], v1, s[52:55], s30 offen")
        e.lab("L_end2")
        e("s_endpgm")
        kern.append((K2, rb + 4 * NS))
    e.raw('.section .rodata,"a"')
    for name, nn in kern:
        e.raw(".p2align 6")
        e.raw(f".amdhsa_kernel {name}")
        e.raw(f"  .amdhsa_next_free_vgpr {nn}")
        e.raw(f"  .amdhsa_next_free_sgpr 88")
        e.raw(f"  .amdhsa_accum_offset {(nn+3)//4*4}")
        e.raw("  .amdhsa_group_segment_fixed_size 0")
        e.raw("  .amdhsa_kernarg_size 80")
        e.raw("  .amdhsa_user_sgpr_count 2")
        e.raw("  .amdhsa_user_sgpr_kernarg_segment_ptr 1")
        e.raw("  .amdhsa_system_sgpr_workgroup_id_x 1")
        e.raw(".end_amdhsa_kernel")
    return hdr + e.text()

if __name__ == "__main__":
    kw = eval("dict(%s)" % (sys.argv[2] if len(sys.argv) > 2 else ""))
    open(sys.argv[1], "w").write(gen(**kw))
```

```python
import sys, math, struct
from gen import NAME, HEADER, f2u, Em, H, S, DH, ROWB, HEADB, REC

def gen(W=4, NWG=256, n=2, pol="nt", rot=48, jm=True, minlds=0, stamp=False, tstamp=0, fused=True, offs=None, prio=0, xw=False, fakevs=0, vpol='nt', spol='nt', wpol='', dbgt=False):
    NS = NWG // H
    G = NS * W
    lgG = int(math.log2(G)); assert 1 << lgG == G
    NSTEP = S // 4 // G
    P = n if n % 2 else n // 2
    assert n // 2 + 1 <= 15
    STRIDE = G * 4 * ROWB
    NT = 64
    pf = (" " + pol) if pol else ""
    vpf = (" " + vpol) if vpol else ""
    spf = (" " + spol) if spol else ""
    wpf = (" " + wpol) if wpol else ""
    e = Em()
    K1 = NAME + "_kernel"
    K2 = "combine_kernel"
    lds_stat = W * 4 * 768
    lds_flag = lds_stat + W * 4 * 16
    lds = max(lds_flag + 16, minlds)
    hdr = HEADER
    if fused:
        hdr += f"; @launch grid=({NWG},1,1) block=({64*W},1,1) lds={lds}\n"
    else:
        hdr += f"; @launch kernel={K1} grid=({NWG},1,1) block=({64*W},1,1) lds={lds}\n"
        hdr += f"; @launch kernel={K2} grid=(32,1,1) block=(256,1,1) lds=0\n"
    e.raw('.amdgcn_target "amdgcn-amd-amdhsa--gfx950"')
    e.raw(".text")
    e.raw(f".globl {K1}")
    e.raw(".p2align 8")
    e.raw(f".type {K1},@function")
    e.lab(K1)
    vOffK, vOffS, vM, vL, vC, vVS, vWZ, vVSN, vVZN = 1, 2, 3, 4, 5, 6, 7, 8, 9
    vS, vW, vT = 10, 12, 14
    vAcc, vCoef, vNB = 16, 28, 40
    vCoefB, vNBB = 42, 54
    vA = 56
    vRing = 58
    nv = vRing + 12 * n
    vTS = nv
    if tstamp:
        tstamp = 1
        nv += 2
    def R(slot): return vRing + 12 * slot
    sPK, sPV, sVs, sH, sJ, sWv = 24, 25, 26, 27, 28, 29
    sIK, sIV, sI, sPos, sM = 72, 73, 74, 75, 78
    e(f"s_cmp_ge_u32 s2, {NWG}")
    e("s_cbranch_scc1 L_end1")
    if stamp or dbgt:
        e("s_memrealtime s[60:61]")
    e("s_load_dwordx4 s[32:35], s[0:1], 0")
    e("s_load_dwordx4 s[36:39], s[0:1], 16")
    e("s_load_dwordx4 s[40:43], s[0:1], 32")
    e("s_load_dwordx4 s[44:47], s[0:1], 48")
    e("s_load_dwordx4 s[80:83], s[0:1], 64")
    if prio:
        e(f"s_setprio {prio}")
    lg = int(math.log2(NS)); assert 1 << lg == NS
    if jm:
        e(f"s_and_b32 s{sH}, s2, 31")
        e(f"s_lshr_b32 s{sJ}, s2, 5")
    else:
        e(f"s_lshr_b32 s{sH}, s2, {lg}")
        e(f"s_and_b32 s{sJ}, s2, {NS-1}")
    e("v_lshrrev_b32 v14, 6, v0")
    e("v_and_b32 v0, 63, v0")
    e(f"v_readfirstlane_b32 s{sWv}, v14")
    e("v_lshrrev_b32 v14, 4, v0")
    e("v_and_b32 v15, 15, v0")
    e(f"v_mul_u32_u24 v{vOffK}, {ROWB}, v14")
    e(f"v_lshl_add_u32 v{vOffK}, v15, 4, v{vOffK}")
    e(f"v_lshlrev_b32 v{vOffS}, {3+lgG}, v15")
    e(f"v_lshl_add_u32 v{vOffS}, v14, 1, v{vOffS}")
    e(f"v_lshlrev_b32 v13, 3, v15")
    e(f"s_mul_i32 s{sM}, s{sJ}, {W}")
    e(f"s_add_u32 s{sM}, s{sM}, s{sWv}")
    if offs is None:
        e(f"s_mul_i32 s{sPos}, s{sH}, {rot}")
    else:
        a, b = offs
        e(f"s_mul_i32 s{sPos}, s{sH}, {b}")
        e(f"s_add_u32 s{sPos}, s{sPos}, {a}")
        e(f"s_mul_i32 s{sPos}, s{sPos}, s{sH}")
    e(f"s_and_b32 s{sPos}, s{sPos}, {NSTEP-1}")
    e(f"s_mul_i32 s{sPK}, s{sPos}, {STRIDE}")
    e(f"s_mul_i32 s30, s{sM}, {4*ROWB}")
    e(f"s_add_u32 s{sPK}, s{sPK}, s30")
    e(f"s_mov_b32 s{sPV}, s{sPK}")
    e(f"s_lshl_b32 s{sVs}, s{sPos}, {3+lgG}")
    e(f"s_lshl_b32 s30, s{sM}, 3")
    e(f"s_add_u32 s{sVs}, s{sVs}, s30")
    e(f"s_mul_i32 s48, s{sH}, 768")
    e(f"s_mul_i32 s49, s{sH}, 384")
    e(f"s_mul_i32 s50, s{sH}, {HEADB}")
    e(f"s_lshl_b32 s51, s{sH}, 16")
    e(f"s_mov_b32 s{sIK}, {NSTEP}")
    e(f"s_mov_b32 s{sIV}, {NSTEP}")
    e(f"s_mov_b32 s{sI}, 0")
    e(f"s_mov_b32 s79, 0")
    e(f"v_mov_b32 v{vVSN}, 0")
    e(f"v_mov_b32 v{vVZN}, 0")
    e(f"v_add_u32 v{vA}, s{sVs}, v{vOffS}")
    e(f"v_and_b32 v{vA}, 0xffff, v{vA}")
    e(f"s_add_u32 s{sVs}, s{sVs}, {16*8*G}")
    e("s_waitcnt lgkmcnt(0)")
    def srd(d, lo, nrec, add=None):
        if add is None:
            e(f"s_mov_b32 s{d}, s{lo}")
            e(f"s_and_b32 s{d+1}, s{lo+1}, 0xffff")
        else:
            e(f"s_add_u32 s{d}, s{lo}, s{add}")
            e(f"s_addc_u32 s{d+1}, s{lo+1}, 0")
            e(f"s_and_b32 s{d+1}, s{d+1}, 0xffff")
        e(f"s_mov_b32 s{d+2}, {nrec}")
        e(f"s_mov_b32 s{d+3}, 0x20000")
    srd(4, 34, HEADB, 50)
    srd(8, 36, HEADB, 50)
    def issue(kind, slot, first=False):
        base = R(slot)
        sr, sp, si, nr = ("s[4:7]", sPK, sIK, 6) if kind == "K" else ("s[8:11]", sPV, sIV, 10)
        if not first:
            e(f"s_cmp_eq_u32 s{si}, 0")
            e(f"s_cselect_b32 s{nr}, 0, s{nr}")
        for i in range(3):
            e(f"buffer_load_dwordx4 v[{base+4*i}:{base+4*i+3}], v{vOffK}, {sr}, s{sp} offen offset:{256*i}{pf}")
        e(f"s_sub_u32 s{si}, s{si}, 1")
        e(f"s_add_u32 s{sp}, s{sp}, {STRIDE}")
        e(f"s_sub_u32 s30, s{sp}, {HEADB}")
        e(f"s_cselect_b32 s{sp}, s{sp}, s30")
    issue("K", 0, True)
    srd(20, 32, H * DH * 2)
    for i in range(3):
        e(f"buffer_load_dwordx2 v[{16+2*i}:{17+2*i}], v13, s[20:23], s49 offen offset:{128*i}{spf}")
    srd(52, 38, H * 2 * DH * 2)
    for i in range(3):
        e(f"buffer_load_dwordx2 v[{22+2*i}:{23+2*i}], v13, s[52:55], s48 offen offset:{128*i}{spf}")
    for i in range(3):
        e(f"buffer_load_dwordx2 v[{34+2*i}:{35+2*i}], v13, s[52:55], s48 offen offset:{384+128*i}{spf}")
    srd(56, 40, H * 2 * DH * 2)
    for i in range(3):
        e(f"buffer_load_dwordx2 v[{48+2*i}:{49+2*i}], v13, s[56:59], s48 offen offset:{384+128*i}{spf}")
    for i in range(3):
        e(f"buffer_load_dwordx2 v[{28+2*i}:{29+2*i}], v13, s[56:59], s48 offen offset:{128*i}{spf}")
    srd(12, 42, S * 2, 51)
    srd(16, 44, S * 2, 51)
    e(f"buffer_load_short_d16_hi v{vVSN}, v{vA}, s[12:15], 0 offen{vpf}")
    e(f"buffer_load_short_d16_hi v{vVZN}, v{vA}, s[16:19], 0 offen{vpf}")
    for c in range(1, n):
        issue("K" if c % 2 == 0 else "V", c, True)
    e(f"s_waitcnt vmcnt({3*(n-1)})")
    CS = (DH ** -0.5) * math.log2(math.e)
    e(f"s_mov_b32 s50, 0x{f2u(CS):08x}")
    for r_ in (vNB, vNB + 1, vNBB, vNBB + 1):
        e(f"v_mov_b32 v{r_}, 0")
    for i in range(6):
        qr = 16 + i
        e(f"v_lshlrev_b32 v10, 16, v{qr}")
        e(f"v_and_b32 v11, 0xffff0000, v{qr}")
        e(f"v_mul_f32 v10, s50, v10")
        e(f"v_mul_f32 v11, s50, v11")
        for (kr, zr, nb) in ((22 + i, 28 + i, vNB), (34 + i, 48 + i, vNBB)):
            e(f"v_lshlrev_b32 v12, 16, v{kr}")
            e(f"v_and_b32 v13, 0xffff0000, v{kr}")
            e(f"v_lshlrev_b32 v14, 16, v{zr}")
            e(f"v_and_b32 v15, 0xffff0000, v{zr}")
            e(f"v_mul_f32 v{kr}, v10, v12")
            e(f"v_mul_f32 v{zr}, v11, v13")
            e(f"v_fma_f32 v{nb}, -v{kr}, v14, v{nb}")
            e(f"v_fma_f32 v{nb+1}, -v{zr}, v15, v{nb+1}")
    for i in range(6):
        e(f"v_mov_b32 v{16+i}, v{48+i}")
    for i in range(6):
        e(f"v_mov_b32 v{vCoefB+2*i}, v{34+i}")
        e(f"v_mov_b32 v{vCoefB+2*i+1}, v{16+i}")
    for i in range(6):
        e(f"v_mov_b32 v{16+i}, v{28+i}")
    for i in range(6):
        e(f"v_mov_b32 v{vCoef+2*i}, v{22+i}")
        e(f"v_mov_b32 v{vCoef+2*i+1}, v{16+i}")
    e(f"s_sub_u32 s30, s{sPos}, 1")
    e(f"s_and_b32 s30, s30, {NSTEP//2}")
    e("s_cbranch_scc0 L_g0")
    for i in range(14):
        e(f"v_swap_b32 v{vCoef+i}, v{vCoefB+i}")
    e.lab("L_g0")
    for i in range(12):
        e(f"v_mov_b32 v{vAcc+i}, 0")
    e(f"v_mov_b32 v{vM}, 0xff800000")
    e(f"v_mov_b32 v{vL}, 0")
    e(f"v_mov_b32 v{vC}, 0")
    if tstamp:
        srd(64, 82, 256 << 20)
        e(f"s_mul_i32 s68, s2, {W}")
        e(f"s_add_u32 s68, s68, s{sWv}")
        e(f"s_mul_i32 s68, s68, {4 * (NSTEP // tstamp)}")
        e(f"s_add_u32 s68, s68, {65 << 20}")
        e(f"v_lshlrev_b32 v{vTS+1}, 2, v0")
    ool = Em()
    e.lab("L_loop")
    for i in range(P):
        k = R((2 * i) % n); v = R((2 * i + 1) % n)
        e(f"s_and_b32 s30, s{sPos}, {NSTEP//2-1}")
        e(f"s_cbranch_scc0 L_swap_{i}")
        e.lab(f"L_swapr_{i}")
        ool.lab(f"L_swap_{i}")
        for j in range(14):
            ool(f"v_swap_b32 v{vCoef+j}, v{vCoefB+j}")
        ool(f"s_branch L_swapr_{i}")
        def xwait(tag):
            e(f"s_cmp_eq_u32 s79, 0")
            e(f"s_cbranch_scc0 L_xw_{tag}")
            e(f"s_waitcnt vmcnt({3*(n-1)})")
            e.lab(f"L_xwr_{tag}")
            ool.lab(f"L_xw_{tag}")
            ool(f"s_waitcnt vmcnt({3*(n-1)+2})")
            ool(f"s_sub_u32 s79, s79, 1")
            ool(f"s_branch L_xwr_{tag}")
        if xw and n > 2:
            xwait(f"k{i}")
            e(f"s_and_b32 s30, s{sI}, 15")
        else:
            e(f"s_and_b32 s30, s{sI}, 15")
            e(f"s_waitcnt vmcnt({3*(n-1)})")
        e(f"s_cbranch_scc0 L_tile_{i}")
        e.lab(f"L_tiler_{i}")
        ool.lab(f"L_tile_{i}")
        ool(f"v_mov_b32 v{vVS}, v{vVSN}")
        ool(f"v_mul_f32 v{vWZ}, v{vVSN}, v{vVZN}")
        ool(f"v_add_u32 v{vA}, s{sVs}, v{vOffS}")
        ool(f"v_and_b32 v{vA}, 0xffff, v{vA}")
        if fakevs != 2:
            ool(f"s_add_u32 s{sVs}, s{sVs}, {16*8*G}")
        if fakevs != 1:
            ool(f"buffer_load_short_d16_hi v{vVSN}, v{vA}, s[12:15], 0 offen{vpf}")
            ool(f"buffer_load_short_d16_hi v{vVZN}, v{vA}, s[16:19], 0 offen{vpf}")
        if xw:
            ool(f"s_mov_b32 s79, {n-1}")
        ool(f"s_branch L_tiler_{i}")
        for j in range(12):
            e(f"v_cvt_f32_i32 v{k+j}, v{k+j}")
        e(f"v_pk_fma_f32 v[{vS}:{vS+1}], v[{k}:{k+1}], v[{vCoef}:{vCoef+1}], v[{vNB}:{vNB+1}]")
        for j in range(1, 6):
            e(f"v_pk_fma_f32 v[{vS}:{vS+1}], v[{k+2*j}:{k+2*j+1}], v[{vCoef+2*j}:{vCoef+2*j+1}], v[{vS}:{vS+1}]")
        issue("K" if n % 2 == 0 else "V", (2 * i) % n)
        e(f"v_add_f32 v{vS}, v{vS}, v{vS+1}")
        e(f"s_add_u32 s{sPos}, s{sPos}, 1")
        e(f"s_add_u32 s{sI}, s{sI}, 1")
        for rot_ in (8, 4, 2, 1):
            e(f"v_add_f32_dpp v{vS}, v{vS}, v{vS} row_ror:{rot_} row_mask:0xf bank_mask:0xf")
            if rot_ != 1:
                e("s_nop 1")
        e(f"v_cmp_gt_f32 vcc, v{vS}, v{vM}")
        if xw:
            xwait(f"v{i}")
        else:
            e(f"s_waitcnt vmcnt({3*(n-1)})")
        cv = [f"v_cvt_f32_i32 v{v+j}, v{v+j}" for j in range(12)]
        for _ in range(4): e(cv.pop(0))
        e(f"s_cbranch_vccnz L_resc_{i}")
        e.lab(f"L_rescr_{i}")
        ool.lab(f"L_resc_{i}")
        ool(f"v_max_f32 v{vT}, v{vS}, v{vM}")
        ool(f"v_sub_f32 v{vT+1}, v{vM}, v{vT}")
        ool(f"v_exp_f32 v{vW}, v{vT+1}")
        ool(f"v_mov_b32 v{vM}, v{vT}")
        for j in range(6):
            ool(f"v_pk_mul_f32 v[{vAcc+2*j}:{vAcc+2*j+1}], v[{vAcc+2*j}:{vAcc+2*j+1}], v[{vW}:{vW+1}] op_sel_hi:[1,0]")
        ool(f"v_mul_f32 v{vL}, v{vL}, v{vW}")
        ool(f"v_mul_f32 v{vC}, v{vC}, v{vW}")
        ool(f"s_branch L_rescr_{i}")
        e(f"v_sub_f32 v{vT}, v{vS}, v{vM}")
        e(f"v_exp_f32 v{vT}, v{vT}")
        for c_ in cv: e(c_)
        e(f"v_add_f32 v{vL}, v{vL}, v{vT}")
        e(f"v_mul_f32_dpp v{vW}, v{vVS}, v{vT} row_newbcast:0 row_mask:0xf bank_mask:0xf")
        e(f"v_fmac_f32_dpp v{vC}, v{vWZ}, v{vT} row_newbcast:0 row_mask:0xf bank_mask:0xf")
        e(f"v_mov_b32_dpp v{vVS}, v{vVS} row_ror:15 row_mask:0xf bank_mask:0xf")
        e(f"v_mov_b32_dpp v{vWZ}, v{vWZ} row_ror:15 row_mask:0xf bank_mask:0xf")
        for j in range(6):
            e(f"v_pk_fma_f32 v[{vAcc+2*j}:{vAcc+2*j+1}], v[{v+2*j}:{v+2*j+1}], v[{vW}:{vW+1}], v[{vAcc+2*j}:{vAcc+2*j+1}] op_sel_hi:[1,0,1]")
        issue("V" if n % 2 == 0 else "K", (2 * i + 1) % n)
        if tstamp:
            e("s_memrealtime s[70:71]")
            e(f"s_sub_u32 s30, s{sI}, 1")
            e(f"s_and_b32 m0, s30, 63")
            e("s_waitcnt lgkmcnt(0)")
            e(f"v_writelane_b32 v{vTS}, s70, m0")
            e(f"s_and_b32 s30, s{sI}, 63")
            e(f"s_cbranch_scc1 L_nots_{i}")
            e(f"buffer_store_dword v{vTS}, v{vTS+1}, s[64:67], s68 offen")
            e("s_add_u32 s68, s68, 256")
            e.lab(f"L_nots_{i}")
        if i == P - 1:
            e(f"s_cmp_lt_u32 s{sI}, {NSTEP}")
            e("s_cbranch_scc1 L_loop")
        elif NSTEP % P:
            e(f"s_cmp_ge_u32 s{sI}, {NSTEP}")
            e("s_cbranch_scc1 L_done")
    e.lab("L_done")
    if stamp:
        e("s_memrealtime s[62:63]")
        e("s_getreg_b32 s30, hwreg(HW_REG_XCC_ID)")
        e("s_getreg_b32 s31, hwreg(HW_REG_HW_ID)")
        e("s_waitcnt lgkmcnt(0)")
        e("v_mov_b32 v44, s60")
        e("v_mov_b32 v45, s62")
        e("v_mov_b32 v46, s30")
        e("v_mov_b32 v47, s31")
        srd(20, 82, 128 << 20)
        e(f"s_mul_i32 s30, s2, {W}")
        e(f"s_add_u32 s30, s30, s{sWv}")
        e("s_lshl_b32 s30, s30, 4")
        e(f"s_add_u32 s30, s30, {64 << 20}")
        e("v_mov_b32 v48, 0")
        e("buffer_store_dwordx4 v[44:47], v48, s[20:23], s30 offen")
    e(f"s_mul_i32 s30, s{sWv}, 3072")
    e(f"v_add_u32 v{vT}, s30, v{vOffK}")
    for i in range(3):
        e(f"ds_write_b128 v{vT}, v[{vAcc+4*i}:{vAcc+4*i+3}] offset:{256*i}")
    e("v_lshrrev_b32 v10, 4, v0")
    e(f"s_lshl_b32 s30, s{sWv}, 2")
    e("v_add_u32 v10, s30, v10")
    e("v_lshlrev_b32 v10, 4, v10")
    e(f"v_mov_b32 v20, v{vM}")
    e(f"v_mov_b32 v21, v{vL}")
    e(f"v_mov_b32 v22, v{vC}")
    e(f"v_mov_b32 v23, 0")
    e(f"ds_write_b128 v10, v[20:23] offset:{lds_stat}")
    e("s_waitcnt vmcnt(0) lgkmcnt(0)")
    if W > 1:
        e("s_barrier")
        e(f"s_cmp_lg_u32 s{sWv}, 0")
        e("s_cbranch_scc1 L_end1")
    NP = W * 4
    wt = " sc0 sc1" if fused else ""
    e("v_min_u32 v1, 47, v0")
    e("v_lshlrev_b32 v1, 4, v1")
    e("v_mov_b32 v2, 0")
    e(f"v_mov_b32 v3, 0xff800000")
    for i in range(NP):
        e(f"ds_read_b128 v[{16+4*i}:{19+4*i}], v2 offset:{lds_stat + i*16}")
    ob = 16 + 4 * NP
    for i in range(NP):
        e(f"ds_read_b128 v[{ob+4*i}:{ob+3+4*i}], v1 offset:{i*768}")
    e(f"s_waitcnt lgkmcnt({min(NP,15)})")
    for i in range(0, NP, 2):
        e(f"v_max3_f32 v3, v3, v{16+4*i}, v{20+4*i}")
    for i in range(NP):
        e(f"v_sub_f32 v{16+4*i}, v{16+4*i}, v3")
    for i in range(NP):
        e(f"v_exp_f32 v{16+4*i}, v{16+4*i}")
    for r_ in (4, 5, 8, 9, 10, 11):
        e(f"v_mov_b32 v{r_}, 0")
    for i in range(NP):
        e(f"v_fmac_f32 v4, v{16+4*i}, v{17+4*i}")
        e(f"v_fmac_f32 v5, v{16+4*i}, v{18+4*i}")
    e("s_waitcnt lgkmcnt(0)")
    for i in range(NP):
        for d in range(4):
            e(f"v_fmac_f32 v{8+d}, v{16+4*i}, v{ob+4*i+d}")
    for d in range(4):
        e(f"v_sub_f32 v{8+d}, v{8+d}, v5")
    e("v_cmp_eq_u32 vcc, 48, v0")
    e("v_cndmask_b32 v8, v8, v3, vcc")
    e("v_cndmask_b32 v9, v9, v4, vcc")
    e("v_lshlrev_b32 v1, 4, v0")
    srd(20, 82, NWG * REC)
    e(f"s_mul_i32 s30, s{sH}, {NS}")
    e(f"s_add_u32 s30, s30, s{sJ}")
    e(f"s_mul_i32 s30, s30, {REC}")
    e("v_cmp_gt_u32 vcc, 49, v0")
    e("s_and_b64 exec, exec, vcc")
    e(f"buffer_store_dwordx4 v[8:11], v1, s[20:23], s30 offen{wt}{wpf}")
    nvmax = max(nv, ob + 4 * NP)
    if fused:
        e(f"s_lshl_b32 s31, s{sH}, 3")
        srd(52, 80, 256)
        e("v_mov_b32 v6, 1")
        e("s_waitcnt vmcnt(0)")
        e("s_mov_b64 exec, 1")
        e("buffer_atomic_add v6, off, s[52:55], s31 sc0 sc1")
        e("s_waitcnt vmcnt(0)")
        e("v_readfirstlane_b32 s31, v6")
        e(f"s_cmp_lg_u32 s31, {NS-1}")
        e("s_cbranch_scc1 L_end1")
        e("s_mov_b64 exec, -1")
        e("v_min_u32 v1, 47, v0")
        e("v_lshlrev_b32 v1, 4, v1")
        e("v_mov_b32 v2, 0")
        e(f"s_mul_i32 s30, s{sH}, {NS*REC}")
        sb = 16; rb = 16 + 2 * NS
        for j in range(NS):
            if j % 4 == 0:
                e(f"s_add_u32 s33, s30, {j*REC}")
            e(f"buffer_load_dwordx2 v[{sb+2*j}:{sb+2*j+1}], v2, s[20:23], s33 offen offset:{(j%4)*REC+768} sc0 sc1{wpf}")
            e(f"buffer_load_dwordx4 v[{rb+4*j}:{rb+4*j+3}], v1, s[20:23], s33 offen offset:{(j%4)*REC} sc0 sc1{wpf}")
        srd(52, 46, H * DH * 2)
        e(f"v_mov_b32 v3, 0xff800000")
        for r_ in (4, 8, 9, 10, 11):
            e(f"v_mov_b32 v{r_}, 0")
        e("s_waitcnt vmcnt(0)")
        for j in range(0, NS, 2):
            e(f"v_max3_f32 v3, v3, v{sb+2*j}, v{sb+2*j+2}")
        for j in range(NS):
            e(f"v_sub_f32 v{sb+2*j}, v{sb+2*j}, v3")
        for j in range(NS):
            e(f"v_exp_f32 v{sb+2*j}, v{sb+2*j}")
        e("s_nop 0")
        for j in range(NS):
            e(f"v_fmac_f32 v4, v{sb+2*j}, v{sb+2*j+1}")
        e("v_rcp_f32 v4, v4")
        for j in range(NS):
            for d in range(4):
                e(f"v_fmac_f32 v{8+d}, v{sb+2*j}, v{rb+4*j+d}")
        for d in range(4):
            e(f"v_mul_f32 v{8+d}, v{8+d}, v4")
        e("v_cvt_pk_bf16_f32 v8, v8, v9")
        e("v_cvt_pk_bf16_f32 v9, v10, v11")
        e("v_lshlrev_b32 v1, 3, v0")
        e(f"s_mul_i32 s30, s{sH}, 384")
        e("v_cmp_gt_u32 vcc, 48, v0")
        e("s_and_b64 exec, exec, vcc")
        e(f"buffer_store_dwordx2 v[8:9], v1, s[52:55], s30 offen{wpf}")
        nvmax = max(nvmax, rb + 4 * NS)
        if dbgt:
            e("s_memrealtime s[62:63]")
            srd(52, 80, 256)
            e(f"s_lshl_b32 s31, s{sH}, 3")
            e("s_waitcnt lgkmcnt(0)")
            e("s_sub_u32 s62, s62, s60")
            e("v_mov_b32 v6, s62")
            e("s_mov_b64 exec, 1")
            e("buffer_store_dword v6, off, s[52:55], s31 offset:4")
    e.lab("L_end1")
    e("s_endpgm")
    e.l += ool.l
    kern = [(K1, nvmax)]
    if not fused:
        e.raw(f".globl {K2}")
        e.raw(".p2align 8")
        e.raw(f".type {K2},@function")
        e.lab(K2)
        e("s_cmp_ge_u32 s2, 32")
        e("s_cbranch_scc1 L_end2")
        e("s_load_dwordx2 s[8:9], s[0:1], 56")
        e("s_load_dwordx2 s[10:11], s[0:1], 72")
        e("v_lshrrev_b32 v1, 6, v0")
        e("s_nop 0")
        e("v_readfirstlane_b32 s3, v1")
        e("s_cmp_lg_u32 s3, 0")
        e("s_cbranch_scc1 L_end2")
        e("v_min_u32 v1, 47, v0")
        e("v_lshlrev_b32 v1, 4, v1")
        e("v_mov_b32 v2, 0")
        e(f"s_mul_i32 s30, s2, {NS*REC}")
        e("s_waitcnt lgkmcnt(0)")
        srd(20, 10, NWG * REC)
        sb = 16; rb = 16 + 2 * NS
        for j in range(NS):
            if j % 4 == 0:
                e(f"s_add_u32 s33, s30, {j*REC}")
            e(f"buffer_load_dwordx2 v[{sb+2*j}:{sb+2*j+1}], v2, s[20:23], s33 offen offset:{(j%4)*REC+768}{wpf}")
            e(f"buffer_load_dwordx4 v[{rb+4*j}:{rb+4*j+3}], v1, s[20:23], s33 offen offset:{(j%4)*REC}{wpf}")
        srd(52, 8, H * DH * 2)
        e(f"v_mov_b32 v3, 0xff800000")
        for r_ in (4, 8, 9, 10, 11):
            e(f"v_mov_b32 v{r_}, 0")
        e("s_waitcnt vmcnt(0)")
        for j in range(0, NS, 2):
            e(f"v_max3_f32 v3, v3, v{sb+2*j}, v{sb+2*j+2}")
        for j in range(NS):
            e(f"v_sub_f32 v{sb+2*j}, v{sb+2*j}, v3")
        for j in range(NS):
            e(f"v_exp_f32 v{sb+2*j}, v{sb+2*j}")
        e("s_nop 0")
        for j in range(NS):
            e(f"v_fmac_f32 v4, v{sb+2*j}, v{sb+2*j+1}")
        e("v_rcp_f32 v4, v4")
        for j in range(NS):
            for d in range(4):
                e(f"v_fmac_f32 v{8+d}, v{sb+2*j}, v{rb+4*j+d}")
        for d in range(4):
            e(f"v_mul_f32 v{8+d}, v{8+d}, v4")
        e("v_cvt_pk_bf16_f32 v8, v8, v9")
        e("v_cvt_pk_bf16_f32 v9, v10, v11")
        e("v_lshlrev_b32 v1, 3, v0")
        e(f"s_mul_i32 s30, s2, 384")
        e("v_cmp_gt_u32 vcc, 48, v0")
        e("s_and_b64 exec, exec, vcc")
        e(f"buffer_store_dwordx2 v[8:9], v1, s[52:55], s30 offen{wpf}")
        e.lab("L_end2")
        e("s_endpgm")
        kern.append((K2, rb + 4 * NS))
    e.raw('.section .rodata,"a"')
    for name, nn in kern:
        e.raw(".p2align 6")
        e.raw(f".amdhsa_kernel {name}")
        e.raw(f"  .amdhsa_next_free_vgpr {nn}")
        e.raw(f"  .amdhsa_next_free_sgpr 88")
        e.raw(f"  .amdhsa_accum_offset {(nn+3)//4*4}")
        e.raw("  .amdhsa_group_segment_fixed_size 0")
        e.raw("  .amdhsa_kernarg_size 80")
        e.raw("  .amdhsa_user_sgpr_count 2")
        e.raw("  .amdhsa_user_sgpr_kernarg_segment_ptr 1")
        e.raw("  .amdhsa_system_sgpr_workgroup_id_x 1")
        e.raw(".end_amdhsa_kernel")
    return hdr + e.text()

if __name__ == "__main__":
    kw = eval("dict(%s)" % (sys.argv[2] if len(sys.argv) > 2 else ""))
    open(sys.argv[1], "w").write(gen(**kw))
```
